```python
import torch

def _softmax(x, axis=-1):
    return torch.softmax(x, dim=axis)
def _gelu(x):
    return torch.nn.functional.gelu(x, approximate="tanh")
def _silu(x):
    return torch.nn.functional.silu(x)
def _sigmoid(x):
    return torch.sigmoid(x)
def _layernorm(x, axis=-1, eps=1e-5):
    m = x.mean(dim=axis, keepdim=True)
    v = x.var(dim=axis, keepdim=True, unbiased=False)
    return (x - m) / torch.sqrt(v + eps)
def _scatter_add(tgt, idx, src, axis=0):
    return tgt.clone().index_add_(axis, idx, src)
def _segment_sum(src, seg, n):
    out = torch.zeros((n,) + src.shape[1:], dtype=src.dtype)
    return out.index_add_(0, seg, src)
def _pad(x, pw):
    flat = tuple(v for pair in reversed(pw) for v in pair)
    return torch.nn.functional.pad(x, flat)

kernel_name = 'interleave_layers__sliding_block__dense_activation_silu__prompt'

def setup_inputs():

    _w = (lambda a: (lambda t: t.to(torch.bfloat16) if t.is_floating_point() else t)(torch.as_tensor(a)))
    def _A_setup():
        B, S, D = 1, 2048, 1024
        return {
            "x": _w((lambda *s: torch.randn(*s, dtype=torch.bfloat16) * 0.05)(B, S, D)),
            "wqkv": _w((lambda *s: torch.randn(*s, dtype=torch.bfloat16) * 0.05)(D, 3 * D)),
            "wo": _w((lambda *s: torch.randn(*s, dtype=torch.bfloat16) * 0.05)(D, D)),
        }
    _A_in = _A_setup()

    def _B_setup():
        B, S, D, F = 1, 2048, 1024, 3584
        return {
            "x": _w((lambda *s: torch.randn(*s, dtype=torch.bfloat16) * 0.05)(B, S, D)),
            "w1": _w((lambda *s: torch.randn(*s, dtype=torch.bfloat16) * 1.6)(D, F) * (D ** -0.5)),
            "w2": _w((lambda *s: torch.randn(*s, dtype=torch.bfloat16) * 1.6)(F, D) * (F ** -0.5)),
        }
    _B_in = _B_setup()

    return {
        "A_x": _A_in["x"],
        "A_wqkv": _A_in["wqkv"],
        "A_wo": _A_in["wo"],
        "B_x": _B_in["x"],
        "B_w1": _B_in["w1"],
        "B_w2": _B_in["w2"],
    }

def reference(A_x, A_wqkv, A_wo, B_x, B_w1, B_w2):
    def _A_ref(x, wqkv, wo):
        B, S, D = x.shape
        H = 32; Dh = D // H; W = 256
        qkv = (lambda x, *d: x.permute(*d))((x @ wqkv).reshape(B, S, 3, H, Dh), 2, 0, 3, 1, 4)
        q, k, v = qkv[0], qkv[1], qkv[2]
        scores = torch.einsum("bhqd,bhkd->bhqk", q, k) * (Dh ** -0.5)
        idx = torch.arange(S)
        mask = (idx[:, None] - idx[None, :] >= 0) & (idx[:, None] - idx[None, :] < W)
        scores = torch.where(mask[None, None], scores, -1e9)
        p = _softmax(scores, axis=-1)
        o = torch.einsum("bhqk,bhkd->bhqd", p, v)
        return (lambda x, *d: x.permute(*d))(o, 0, 2, 1, 3).reshape(B, S, D) @ wo

    def _B_ref(x, w1, w2):
        h = torch.einsum("bsd,df->bsf", x, w1)
        h = _silu(h)
        out = torch.einsum("bsf,fd->bsd", h, w2)
        return out

    x = A_x
    x = x + _A_ref(_layernorm(x, axis=-1), A_wqkv, A_wo)
    x = x + _B_ref(_layernorm(x, axis=-1), B_w1, B_w2)
    x = x + _A_ref(_layernorm(x, axis=-1), A_wqkv, A_wo)
    x = x + _B_ref(_layernorm(x, axis=-1), B_w1, B_w2)
    return x
```

```python
import re

def regs_of(op):
    op = op.strip()
    neg = op.lstrip("-")
    if neg.startswith("abs(") or neg.startswith("|"):
        neg = neg.replace("abs(", "").replace(")", "").replace("|", "")
    m = re.fullmatch(r"([vas])(\d+)", neg)
    if m: return {(m.group(1), int(m.group(2)))}
    m = re.fullmatch(r"([vas])\[(\d+):(\d+)\]", neg)
    if m: return {(m.group(1), i) for i in range(int(m.group(2)), int(m.group(3)) + 1)}
    if neg == "vcc": return {("s", 106), ("s", 107)}
    if neg == "exec": return {("s", 126), ("s", 127)}
    if neg == "m0": return {("s", 124)}
    return set()

TRANS = ("v_exp_f32", "v_log_f32", "v_rcp_f32", "v_rsq_f32", "v_sqrt_f32", "v_sin_f32", "v_cos_f32")

class I:
    __slots__ = ("text", "op", "ops", "kind", "w", "r", "srcA", "srcB", "srcC", "passes", "data", "states", "lds", "wide")
    def __init__(self, text):
        self.text = text
        t = text.split(";")[0].strip()
        self.kind = "other"; self.w = set(); self.r = set(); self.passes = 0; self.data = set(); self.states = 1
        self.srcA = self.srcB = self.srcC = set(); self.lds = False; self.wide = False
        if t.endswith(":") or t.startswith(".") or not t:
            self.kind = "label"; self.op = ""; self.states = 0; return
        parts = t.split(None, 1)
        self.op = op = parts[0]
        rest = parts[1] if len(parts) > 1 else ""
        ops = [x.strip() for x in rest.split(",")] if rest else []
        if ops:
            last = ops[-1].split()
            mods = last[1:]
            ops[-1] = last[0]
        else:
            mods = []
        self.ops = ops
        R = [regs_of(o) for o in ops]
        if op == "s_nop":
            self.kind = "nop"; self.states = int(ops[0], 0) + 1
        elif op.startswith("v_mfma"):
            self.kind = "mfma"; self.w = R[0]; self.srcA, self.srcB, self.srcC = R[1], R[2], R[3]
            self.r = R[1] | R[2] | R[3]
            self.passes = 8 if "32x32x16" in op else 4
        elif op.startswith("v_"):
            self.kind = "valu"
            base = op.replace("_e32", "").replace("_e64", "")
            if base.startswith("v_permlane"):
                self.w = R[0] | R[1]; self.r = R[0] | R[1]; self.kind = "perm"
            elif base in ("v_readfirstlane_b32", "v_readlane_b32"):
                self.w = R[0]; self.r = set().union(*R[1:]); self.kind = "rdlane"
            elif base.startswith("v_add_co") or base.startswith("v_addc_co") or base.startswith("v_sub_co"):
                self.w = R[0] | R[1]; self.r = set().union(*R[2:])
            else:
                self.w = R[0]; self.r = set().union(*R[1:]) if len(R) > 1 else set()
                if base.startswith("v_fmac") or base.startswith("v_dot2c"): self.r = self.r | R[0]
                if base in TRANS: self.kind = "trans"
                if any(m.startswith("row_") or m.startswith("quad_perm") for m in mods): self.kind = "dpp"; self.r = self.r | R[0]
        elif op.startswith("buffer_"):
            self.kind = "vmem"
            self.lds = "lds" in mods
            if op.startswith("buffer_load"):
                if self.lds: self.r = set().union(*R) | {("s", 124)}
                else: self.w = R[0]; self.r = set().union(*R[1:])
            elif op.startswith("buffer_store") or op.startswith("buffer_atomic"):
                self.r = set().union(*R); self.data = R[0]; self.wide = op.endswith("x4") or op.endswith("x3")
        elif op.startswith("ds_"):
            self.kind = "ds"
            if op.startswith("ds_read") or op.startswith("ds_bpermute"):
                self.w = R[0]; self.r = set().union(*R[1:])
            else:
                self.r = set().union(*R)
        elif op.startswith("s_"):
            self.kind = "salu"
            if op.startswith(("s_cmp", "s_cbranch", "s_branch", "s_waitcnt", "s_barrier", "s_sleep", "s_endpgm", "s_setprio", "s_bitcmp")):
                self.r = set().union(*R) if R else set()
            else:
                self.w = R[0] if R else set(); self.r = set().union(*R[1:]) if len(R) > 1 else set()

VALUK = ("valu", "trans", "perm", "rdlane", "dpp")
def vg(s): return {x for x in s if x[0] in "va"}
def sg(s): return {x for x in s if x[0] == "s"}

def need(p, c):
    n = 0
    if p.kind in VALUK:
        pv = vg(p.w); ps = sg(p.w)
        if c.kind == "mfma" and pv & c.r: n = max(n, 2)
        if c.kind in ("perm", "dpp") and pv & c.r: n = max(n, 2)
        if c.kind == "rdlane" and pv & c.r: n = max(n, 1)
        if p.kind == "trans" and c.kind in VALUK and pv & c.r: n = max(n, 1)
        if ps:
            if c.kind in VALUK and ps & c.r: n = max(n, 2 if c.kind != "rdlane" else 4)
            if c.kind == "vmem" and ps & c.r: n = max(n, 5)
            if c.kind == "salu" and ps & c.r and not c.op.startswith("s_cbranch"): n = max(n, 1)
    if p.kind == "mfma":
        big = 12 if p.passes == 8 else 8
        if c.kind == "mfma":
            if p.w & (c.srcA | c.srcB): n = max(n, big)
            if p.w & c.srcC and not (p.w == c.srcC and p.passes == c.passes): n = max(n, big - 2)
            if p.w & c.w and not (p.w == c.srcC and p.passes == c.passes): n = max(n, big - 2)
        elif c.kind in VALUK or c.kind in ("vmem", "ds"):
            if p.w & (c.r | c.w): n = max(n, big)
            if c.kind in VALUK and p.srcC & c.w: n = max(n, 7 if p.passes == 8 else 3)
    if p.kind == "salu" and ("s", 124) in p.w and c.kind == "vmem" and c.lds: n = max(n, 1)
    if p.kind == "vmem" and p.wide and p.data & c.w and (c.kind in VALUK or c.kind in ("mfma", "ds", "vmem")): n = max(n, 2)
    return n

class E:
    def __init__(self):
        self.ins = []
        self.vm_n = 0; self.vm_done = 0; self.vm_tag = {}
        self.lg_n = 0; self.lg_done = 0; self.lg_tag = {}
        self.uid = 0
        self.tail = []
    def raw(self, s): self.ins.append(s)
    def __call__(self, s):
        for l in s.split("\n"):
            l = l.strip()
            if l:
                assert not l.startswith(("buffer_", "ds_")), "use vm()/ds(): " + l
                self.ins.append(l)
    def label(self, n): self.ins.append(n + ":")
    def newlabel(self, b):
        self.uid += 1; return f"L{b}{self.uid}"
    def vm(self, s, tag=None):
        self.ins.append(s); self.vm_n += 1
        self.vm_max = max(getattr(self, "vm_max", 0), self.vm_n - self.vm_done)
        if tag is not None: self.vm_tag[tag] = self.vm_n
    def ds(self, s, tag=None):
        self.ins.append(s); self.lg_n += 1
        if tag is not None: self.lg_tag[tag] = self.lg_n
    def wait(self, vm=None, lg=None):
        parts = []
        if vm is not None:
            tags = vm if isinstance(vm, list) else [vm]
            pos = self.vm_n if "all" in tags else max(self.vm_tag[t] for t in tags)
            if pos > self.vm_done or "all" in tags:
                n = self.vm_n - pos
                parts.append(f"vmcnt({min(n, 63)})")
                self.vm_done = max(self.vm_done, pos)
        if lg is not None:
            tags = lg if isinstance(lg, list) else [lg]
            pos = self.lg_n if "all" in tags else max(self.lg_tag[t] for t in tags)
            if pos > self.lg_done or "all" in tags:
                n = self.lg_n - pos
                parts.append(f"lgkmcnt({min(n, 15)})")
                if n > 15: pos = self.lg_n - 15
                self.lg_done = max(self.lg_done, pos)
        if parts: self.ins.append("s_waitcnt " + " ".join(parts))
    def item(self, it):
        if isinstance(it, str): self(it)
        elif callable(it): it(self)
        elif isinstance(it, list):
            for x in it: self.item(x)
        elif it[0] == "vm": self.vm(it[1], it[2] if len(it) > 2 else None)
        elif it[0] == "ds": self.ds(it[1], it[2] if len(it) > 2 else None)
        elif it[0] == "wait": self.wait(it[1], it[2] if len(it) > 2 else None)
        else: raise ValueError(it)
    def finish(self, verbose=False):
        out = []; parsed = []; nn = 0
        for s in self.ins + self.tail:
            c = I(s)
            if c.kind != "label":
                dist = 0; req = 0
                for p in reversed(parsed):
                    if dist >= 12: break
                    k = need(p, c)
                    if k - dist > req: req = k - dist
                    dist += p.states
                if req > 0:
                    nop = I(f"s_nop {req-1}"); parsed.append(nop); out.append(nop.text); nn += 1
                    if verbose: print("nop", req, "before", s)
            parsed.append(c); out.append(s)
        self.nnops = nn
        return out
```

```python
import sys, math, struct
from emit import E

KNAME = "interleave_layers__sliding_block__dense_activation_silu__prompt_kernel"
def f2u(x): return struct.unpack("<I", struct.pack("<f", x))[0]
LOG2E = 1.4426950408889634

WS_FLAGS = 0
WS_CSP = 0x20000
WS_STAMP = 0x90000
R0 = 0x100000; LAYER = 0x4000000
R_STA = 0x0; R_STB = 0x40000; R_XA = 0x100000; R_XB = 0x500000; R_O = 0x900000; R_KV = 0xD00000; R_H = 0x1500000
WS_BYTES = 268435456
OOB = 0x40000000
L_CS = 131072; L_SCR = 133120; L_STG = 135168; LDS_BYTES = 151552
SRD_WS, SRD_QKV, SRD_WO, SRD_W1, SRD_W2, SRD_X, SRD_OUT, SRD_DBG = 4, 8, 12, 16, 20, 24, 28, 32
sW, sG, sJ, sTB, sLayer, sLdsW, sOffW, sOffX, sFl, sT0, sT1, sSpin = 36, 37, 38, 39, 40, 41, 42, 43, 44, 45, 46, 47
sRot8 = 48
sRot4 = 56
sKVb = 60
sXA, sXB, sO, sH, sKVown, sStA, sStB = 68, 69, 70, 71, 72, 73, 74
sFlagOwn, sFlagRow, sNinv, sK = 75, 76, 77, 78
sXcur = 79
sM1, sM2, sM3 = 80, 82, 84
sStamp = 86
vL16, vL16b, vPollX, vPollKV, vCsT, vCsV, vStW, vStR, vStatSt, vFD, vFlagOff = 1, 2, 3, 4, 5, 6, 7, 8, 9, 10, 11
vRd = 12
vBQ, vBO, vB1, vB1h, vB2 = 20, 21, 22, 23, 24
vPoll, vFlagVal, vM = 25, 26, 27
vD = 28
vOnes, vSel = 32, 36
vC1, vC2 = 40, 42
vSum = 44
vT = 48
vW = 64
vA, vB, vX = 112, 144, 176
vK, vV, vQ = 208, 224, 240

def vr(b, n=4): return f"v[{b}:{b+n-1}]"
def ar(b, n=4): return f"a[{b}:{b+n-1}]"
def srd(b): return f"s[{b}:{b+3}]"

class Gen:
    def __init__(self, stamps=False, opts=None):
        self.e = E(); self.stamps = stamps; self.nstamp = 0
        self.o = dict(D=16)
        if opts: self.o.update(opts)
        self.ring_free_upto = -1
    def stamp(self, idx):
        if self.stamps:
            self.e(f"s_memrealtime s[{sT0+0}:{sT0+1}]" if False else f"s_memrealtime s[100:101]")
            self.e("s_waitcnt lgkmcnt(0)")
            self.e.lg_done = self.e.lg_n
            self.e(f"s_mov_b32 s{sStamp+idx}, s100")
    def dump_stamps(self):
        if not self.stamps: return
        e = self.e
        e(f"s_lshl_b32 s{sT0}, s2, 2\n s_add_u32 s{sT0}, s{sT0}, s{sW}\n s_lshl_b32 s{sT0}, s{sT0}, 7\n s_lshl_b32 s{sT1}, s{sLayer}, 6")
        e(f"s_add_u32 s{sT0}, s{sT0}, s{sT1}\n s_add_u32 s{sT0}, s{sT0}, {WS_STAMP}")
        for i in range(14):
            e(f"v_mov_b32 v0, s{sStamp+i}")
            e.vm(f"buffer_store_dword v0, v{vFlagOff}, {srd(SRD_WS)}, s{sT0} offen offset:{4*i}")
    def flag_items(self, val, after):
        return [("wait", after), [f"s_add_u32 s{sT0}, s{sFl}, {val}", f"v_mov_b32 v{vFlagVal}, s{sT0}"],
                ("vm", f"buffer_store_dword v{vFlagVal}, v{vFlagOff}, {srd(SRD_WS)}, s{sFlagOwn} offen sc1")]
    def poll_load(self, kind, tag):
        if kind == "x": return ("vm", f"buffer_load_dword v{vPoll}, v{vPollX}, {srd(SRD_WS)}, s{sFlagRow} offen sc1", tag)
        return ("vm", f"buffer_load_dword v{vPoll}, v{vPollKV}, {srd(SRD_WS)}, 0 offen sc1", tag)
    def poll_check(self, kind, val, tag):
        def f(e):
            slow = e.newlabel("slow"); back = e.newlabel("back")
            e(f"s_add_u32 s{sT0}, s{sFl}, {val}")
            e.wait(vm=tag)
            e(f"v_cmp_gt_u32 vcc, s{sT0}, v{vPoll}\n s_cbranch_vccnz {slow}")
            e.label(back)
            t = e.tail
            t += [slow + ":", "s_sleep 4", self.poll_load(kind, None)[1], f"s_add_u32 s{sSpin}, s{sSpin}, 1",
                  f"s_cmp_ge_u32 s{sSpin}, 0x40000", "s_cbranch_scc1 Lend", "s_waitcnt vmcnt(0)",
                  f"v_cmp_gt_u32 vcc, s{sT0}, v{vPoll}", f"s_cbranch_vccnz {slow}", f"s_branch {back}"]
        return f
    def stage_desc(self, s):
        if s < 24:
            c = s // 8; col = [2048, 4096, 0][c]
            return SRD_QKV, vBQ, 8*6144 - 1024, col, sRot8 + s % 8, 96, s % 8 == 0
        if s < 32:
            h = (s - 24) // 4
            return SRD_WO, vBO, 4*2048 - 1024, h*32*2048, sRot4 + s % 4, 64, s % 4 == 0
        if s < 56:
            c = (s - 32) // 8
            return SRD_W1, vB1, 8*7168 - 1024, 2048*c, sRot8 + s % 8, 112, s % 8 == 0
        if s < 60:
            return SRD_W1, vB1h, 8*7168 - 1024, 0, sRot4 + s % 4, 224, s == 56
        u = s - 60; blk = u // 8
        tab = sRot8 + u % 8 if blk < 3 else sRot4 + u % 4
        return SRD_W2, vB2, 8*2048 - 1024, blk*1024*2048, tab, 32, u % 8 == 0
    def dma_items(self, s):
        sr, base, step, const, tab, mul, first = self.stage_desc(s % 88)
        it = []
        if first:
            for i in range(4):
                k = const + i*step
                it.append(f"v_add_u32 v{vD+i}, {k}, v{base}" if k else f"v_mov_b32 v{vD+i}, v{base}")
        def chk(e, s=s):
            assert s <= self.ring_free_upto, (s, self.ring_free_upto)
        it.append([chk, f"s_mul_i32 s{sOffW}, s{tab}, {mul}"])
        it.append(f"s_add_u32 m0, s{sLdsW}, {(s % 8)*16384}")
        for i in range(4):
            off = f" offset:{i*1024}" if i else ""
            it.append(("vm", f"buffer_load_dwordx4 v{vD+i}, {srd(sr)}, s{sOffW} offen{off} lds", ("W", s)))
        return it
    def xload_items(self, tab, base, pos0, tagname):
        it = [f"s_add_u32 s{sOffX}, s{tab}, s{base}"]
        for n in range(8):
            p = pos0 + n // 2; reg = (p % 32)*8 + (n % 2)*4
            off = f" offset:{(n % 4)*1024}" if n % 4 else ""
            it.append(("vm", f"buffer_load_dwordx4 {ar(reg)}, v{vL16 if n < 4 else vL16b}, {srd(SRD_WS)}, s{sOffX} offen{off} sc1", (tagname, p)))
        return it
    def frag_reads(self, stage, s, buf, tag):
        it = []
        slot = stage % 8
        for q in range(4):
            for jj in range(2):
                off = (slot % 4)*16384 + s*4096 + jj*2048
                d = vW + buf*16 + q*4 + jj*2
                it.append(("ds", f"ds_read_b64_tr_b16 {vr(d,2)}, v{vRd + (slot//4)*4 + q} offset:{off}", tag))
        return it
    def run(self, name, stage0, steps, fill):
        e = self.e; n = len(steps)
        for t in range(2):
            for it in self.frag_reads(stage0, t, t % 3, (name, t)): e.item(it)
        for t, st in enumerate(steps):
            nt = t + 2
            reads = []
            waits_vm = []
            if st.get("xtag") is not None: waits_vm.append(st["xtag"])
            bar = False
            if nt < n:
                reads = self.frag_reads(stage0 + nt//4, nt % 4, nt % 3, (name, nt))
                if nt % 4 == 0:
                    waits_vm.append(("W", stage0 + nt//4)); bar = True
            e.wait(vm=waits_vm if waits_vm else None, lg=(name, t))
            if bar:
                e("s_barrier"); self.ring_free_upto = max(self.ring_free_upto, stage0 + nt//4 + 6)
            fl = list(fill[t])
            nf = len(fl); fi = 0
            m = 0
            for q in range(4):
                for tt in range(2):
                    w = vr(vW + (t % 3)*16 + q*4); x = ar(st["x"](q, tt)); acc = vr(st["acc"](q, tt))
                    c = "0" if st["first"](q) else acc
                    a_, b_ = (x, w) if st.get("swap") else (w, x)
                    e(f"v_mfma_f32_16x16x32_bf16 {acc}, {a_}, {b_}, {c}")
                    if reads: e.item(reads[m])
                    m += 1
                    upto = (nf*m + 7)//8 if m < 8 else nf
                    while fi < upto: e.item(fl[fi]); fi += 1
    @staticmethod
    def spread(fill, items, t0, t1):
        n = len(items); span = t1 - t0
        for i, it in enumerate(items): fill[t0 + i*span//n].append(it)
    def chunk_steps(self, acc, swap=False, xtag=None, inplace=False, npos=32, pos0=0):
        out = []
        for p in range(npos):
            out.append(dict(acc=(lambda q, tt, acc=acc: acc + 8*q + 4*tt), x=(lambda q, tt, p=p: ((pos0+p) % 32)*8 + 4*tt), swap=swap,
                            first=(lambda q, p=p: p == 0 and not inplace), xtag=(xtag, pos0+p) if xtag else None))
        return out
    def half_steps(self, acc):
        out = []
        for t in range(16):
            st, s = divmod(t, 4)
            out.append(dict(acc=(lambda q, tt: acc + 8*(q & 1) + 4*tt), x=(lambda q, tt, st=st, s=s: (8*st + s + 4*(q >> 1))*8 + 4*tt),
                            first=(lambda q, t=t: t == 0 and q < 2), xtag=None))
        return out
    def stats_load_items(self, base):
        it = []
        for i in range(4):
            off = f" offset:{i*1024}" if i else ""
            it.append(("vm", f"buffer_load_dwordx4 {vr(vK+4*i)}, v{vL16}, {srd(SRD_WS)}, s{base} offen{off} sc1", "stats"))
        return it
    def stats_items(self, mode):
        it = [("wait", "stats")]
        for k in range(4): it.append(f"v_add_f32 v{vK+k}, v{vK+k}, v{vK+4+k}")
        for k in range(4): it.append(f"v_add_f32 v{vK+8+k}, v{vK+8+k}, v{vK+12+k}")
        for k in range(4): it.append(f"v_add_f32 v{vK+k}, v{vK+k}, v{vK+8+k}")
        for sw in ("v_permlane32_swap_b32", "v_permlane16_swap_b32"):
            for k in range(4): it.append(f"v_mov_b32 v{vK+4+k}, v{vK+k}")
            for k in range(4): it.append(f"{sw} v{vK+k}, v{vK+4+k}")
            for k in range(4): it.append(f"v_add_f32 v{vK+k}, v{vK+k}, v{vK+4+k}")
        for tt in range(2): it.append(f"v_mul_f32 v{vC2+tt}, {hex(f2u(-1.0/1024))}, v{vK+2*tt}")
        for tt in range(2): it.append(f"v_mul_f32 v{vK+2*tt+1}, {hex(f2u(1.0/1024))}, v{vK+2*tt+1}")
        for tt in range(2): it.append(f"v_fma_f32 v{vK+2*tt+1}, -v{vC2+tt}, v{vC2+tt}, v{vK+2*tt+1}")
        for tt in range(2): it.append(f"v_max_f32 v{vK+2*tt+1}, 0, v{vK+2*tt+1}")
        for tt in range(2): it.append(f"v_add_f32 v{vK+2*tt+1}, {hex(f2u(1e-5))}, v{vK+2*tt+1}")
        for tt in range(2): it.append(f"v_rsq_f32 v{vC1+tt}, v{vK+2*tt+1}")
        if mode == "ffn":
            it.append("s_nop 0")
            for tt in range(2): it.append(f"v_mul_f32 v{vC1+tt}, {hex(f2u(-LOG2E))}, v{vC1+tt}")
        else:
            for k in (2, 3, 0, 1): it.append(("ds", f"ds_write_b32 v{vStW}, v{vC1+k} offset:{64*k}", "stw"))
            it.append(("wait", None, "stw"))
            for k in range(4): it.append(("ds", f"ds_read_b128 {vr(vQ+4*k)}, v{vStR} offset:{64*k}", "str"))
        return it
    def cs_reads(self, tile, nq=4, extra=None):
        it = []
        for q in range(nq):
            it.append(("ds", f"ds_read_b128 {vr(vT+4*q)}, v{extra if extra else vCsT} offset:{tile*256 + q*64}", "cs"))
        return it
    def kq_epilogue(self, acc, tile, dst, c1):
        it = self.cs_reads(tile) + [("wait", None, "cs")]
        for hh in range(2):
            for tt in range(2):
                for q in (2*hh, 2*hh+1):
                    a = acc + 8*q + 4*tt
                    for r in range(4): it.append(f"v_fma_f32 v{a+r}, v{vT+4*q+r}, v{vC2+tt}, v{a+r}")
                    for r in range(4): it.append(f"v_mul_f32 v{a+r}, v{c1+tt}, v{a+r}")
                    for k in range(2): it.append(f"v_cvt_pk_bf16_f32 v{dst+8*hh+4*tt+2*(q&1)+k}, v{a+2*k}, v{a+2*k+1}")
            for k in range(4): it.append(f"v_permlane16_swap_b32 v{dst+8*hh+k}, v{dst+8*hh+4+k}")
        return it
    def v_epilogue(self, acc):
        it = []
        for q in range(4): it.append(("ds", f"ds_read_b32 v{vT+q}, v{vCsV} offset:{256 + q*64}", "cs"))
        it.append(("wait", None, ["cs", "str"]))
        for hh in range(2):
            for tt in range(2):
                d = vV + 8*hh + 4*tt
                for q in (2*hh, 2*hh+1):
                    a = acc + 8*q + 4*tt
                    for r in range(4): it.append(f"v_fma_f32 v{a+r}, v{vT+q}, v{vQ+8+4*tt+r}, v{a+r}")
                    for r in range(4): it.append(f"v_mul_f32 v{a+r}, v{vQ+4*tt+r}, v{a+r}")
                    for k in range(2): it.append(f"v_cvt_pk_bf16_f32 v{d+2*(q&1)+k}, v{a+2*k}, v{a+2*k+1}")
            for sw in ("v_permlane16_swap_b32", "v_permlane32_swap_b32"):
                for tt in range(2):
                    d = vV + 8*hh + 4*tt
                    for k in range(2): it.append(f"{sw} v{d+k}, v{d+2+k}")
        return it
    def kv_stores(self, src, vaddr, tag):
        it = []
        for n in range(4):
            off = f" offset:{n*1024}" if n else ""
            it.append(("vm", f"buffer_store_dwordx4 {vr(src+4*n)}, v{vaddr}, {srd(SRD_WS)}, s{sKVown} offen{off} sc1", tag))
        return it
    def silu_epilogue(self, acc, tile, nq, hoff, tag):
        if nq == 4: it = self.cs_reads(tile)
        else: it = [f"s_and_b32 s{sT1}, s{sJ}, 1", f"s_lshl_b32 s{sT1}, s{sT1}, 7", f"v_add_u32 v0, s{sT1}, v{vCsT}"] + self.cs_reads(tile, 2, extra="0")
        it.append(("wait", None, "cs"))
        P = vK; T = vV
        n = 0
        for kp in range(nq//2):
            for tt in range(2):
                for q in (2*kp, 2*kp+1):
                    a = acc + 8*q + 4*tt; t = T + 4*(n % 2); n += 1
                    for r in range(4): it.append(f"v_fma_f32 v{a+r}, v{vT+4*q+r}, v{vC2+tt}, v{a+r}")
                    for r in range(4): it.append(f"v_mul_f32 v{a+r}, v{vC1+tt}, v{a+r}")
                    for r in range(4): it.append(f"v_exp_f32 v{t+r}, v{a+r}")
                    for r in range(4): it.append(f"v_fma_f32 v{t+r}, v{t+r}, s{sK}, s{sK}")
                    for r in range(4): it.append(f"v_rcp_f32 v{t+r}, v{t+r}")
                    for r in range(4): it.append(f"v_mul_f32 v{a+r}, v{t+r}, v{a+r}")
                    for k in range(2): it.append(f"v_cvt_pk_bf16_f32 v{P+8*kp+4*tt+2*(q&1)+k}, v{a+2*k}, v{a+2*k+1}")
                off = kp*2048 + tt*1024
                st = ("vm", f"buffer_store_dwordx4 {vr(P+8*kp+4*tt)}, v{vL16}, {srd(SRD_WS)}, s{sT1} offen" + (f" offset:{off}" if off else "") + " sc1", tag)
                it.append(list(hoff) + [st])
        return it
    def pack_x(self):
        e = self.e
        for kp in range(2):
            for tt in range(2):
                for q in (2*kp, 2*kp+1):
                    a = vX + 8*q + 4*tt
                    for k in range(2): e(f"v_cvt_pk_bf16_f32 v{vK+8*kp+4*tt+2*(q&1)+k}, v{a+2*k}, v{a+2*k+1}")
    def publish_x(self, xbase, xadd, stbase, stadd, packed=False):
        e = self.e
        e(f"s_lshl_b32 s{sT0}, s{sJ}, 12\n s_add_u32 s{sT0}, s{sT0}, s{xbase}")
        if xadd: e(f"s_add_u32 s{sT0}, s{sT0}, {xadd}")
        e(f"s_lshl_b32 s{sT1}, s{sJ}, 8\n s_add_u32 s{sT1}, s{sT1}, s{stbase}")
        if stadd: e(f"s_add_u32 s{sT1}, s{sT1}, {stadd}")
        if not packed: self.pack_x()
        S = vV
        n = 0
        for kp in range(2):
            for tt in range(2):
                p = vr(vK + 8*kp + 4*tt)
                e(f"v_mfma_f32_16x16x32_bf16 {vr(S+8*tt)}, {vr(vOnes)}, {p}, {'0' if kp == 0 else vr(S+8*tt)}")
                e(f"v_mfma_f32_16x16x32_bf16 {vr(S+8*tt+4)}, {p}, {p}, {'0' if kp == 0 else vr(S+8*tt+4)}")
                off = kp*2048 + tt*1024
                e.vm(f"buffer_store_dwordx4 {p}, v{vL16}, {srd(SRD_WS)}, s{sT0} offen" + (f" offset:{off}" if off else "") + " sc1", "pub")
        for tt in range(2):
            g = S + 8*tt + 4
            e(f"v_mov_b32 v{vQ+2*tt}, v{S+8*tt}")
            e(f"v_cndmask_b32 v{vQ+2*tt+1}, v{g}, v{g+1}, s[{sM1}:{sM1+1}]")
            e(f"v_cndmask_b32 v{vQ+2*tt+1}, v{vQ+2*tt+1}, v{g+2}, s[{sM2}:{sM2+1}]")
            e(f"v_cndmask_b32 v{vQ+2*tt+1}, v{vQ+2*tt+1}, v{g+3}, s[{sM3}:{sM3+1}]")
        e.vm(f"buffer_store_dwordx4 {vr(vQ)}, v{vStatSt}, {srd(SRD_WS)}, s{sT1} offen sc1", "pub")
    def transition(self, stages, flagval, nfirst=3):
        e = self.e
        e.wait(lg="all")
        e("s_barrier")
        if stages: self.ring_free_upto = stages[-1]
        for s in stages[:nfirst]:
            for it in self.dma_items(s): e.item(it)
        for it in self.flag_items(flagval, "pub"): e.item(it)
        for s in stages[nfirst:]:
            for it in self.dma_items(s): e.item(it)
        e.item(self.poll_load("x", "poll"))
        e.item(self.poll_check("x", flagval, "poll"))
    def x_arrival(self, fill, base, tag, tabs):
        e = self.e; nb = self.o["D"]//8
        for st in range(nb):
            for it in self.xload_items(tabs[st][0], tabs[st][1], 4*st, tag): e.item(it)
        for st in range(nb, 8):
            self.spread(fill, self.xload_items(tabs[st][0], tabs[st][1], 4*st, tag), 4*(st-nb), 4*(st-nb)+4)
        e("s_barrier")
    def w_schedule_head(self, fill, s0, last):
        self.spread(fill, self.dma_items(s0+8), 16, 24)
        for k in range(9, 16): self.spread(fill, self.dma_items(s0+k), 24 + 2*(k-9), 26 + 2*(k-9))
        for k in range(16, last - s0 + 1): self.spread(fill, self.dma_items(s0+k), 4*(k-6)-2, 4*(k-6)+2)
    def kfrag(self, hh, b, s): return ar(128*hh + 8*b + 4*s) if b < 8 else vr(vK + 8*hh + 4*s)
    def vfrag(self, hh, b, s): return ar(128*hh + 64 + 8*b + 4*s) if b < 8 else vr(vV + 8*hh + 4*s)
    def kv_load_items(self, isv, hh, b):
        it = []
        for s in range(2):
            off = hh*2048 + s*1024
            reg = 128*hh + 64*isv + 8*b + 4*s
            it.append(("vm", f"buffer_load_dwordx4 {ar(reg)}, v{vL16b if isv else vL16}, {srd(SRD_WS)}, s{sKVb+b} offen" + (f" offset:{off}" if off else "") + " sc1", ("kv", isv, hh, b)))
        return it
    def mask_items(self):
        MD, MO = vB, vB + 16
        it = []
        for r in range(16):
            c = float(8*(r >> 2) + (r & 3))
            it.append([f"s_mov_b32 s{sT1}, {hex(f2u(c))}", f"v_sub_f32_e64 v{MD+r}, s{sT1}, v{vFD} clamp"])
            it.append(f"v_sub_f32 v{MO+r}, 1.0, v{MD+r}")
            it.append(f"v_mul_f32 v{MD+r}, {hex(f2u(-1e30))}, v{MD+r}")
            it.append(f"v_mul_f32 v{MO+r}, {hex(f2u(-1e30))}, v{MO+r}")
        return it
    def set_exec(self, b):
        if b >= 8: return ["s_mov_b64 exec, -1"]
        return [f"s_cmp_le_u32 s{sNinv}, {b}", "s_cselect_b64 exec, -1, 0"]
    def attn_vm(self, queue, n):
        e = self.e
        if queue and n:
            e("s_mov_b64 exec, -1")
            for _ in range(n):
                if queue: e.item(queue.pop(0))
    def pass1(self, hh, m, queue, nq):
        e = self.e
        MD, MO = vB, vB + 16; S = [vW + 16, vW + 32]
        def smfma(b):
            if b < 8: e.wait(vm=("kv", 0, hh, b))
            d = vr(S[b % 2], 16); c = vr(MO, 16) if b == 0 else vr(MD, 16) if b == 8 else "0"
            return [f"v_mfma_f32_32x32x16_bf16 {d}, {self.kfrag(hh,b,0)}, {vr(vQ+8*hh)}, {c}",
                    f"v_mfma_f32_32x32x16_bf16 {d}, {self.kfrag(hh,b,1)}, {vr(vQ+8*hh+4)}, {d}"]
        e(f"v_mov_b32 v{m}, 0xff800000")
        for x in smfma(0): e(x)
        for b in range(9):
            mm = smfma(b+1) if b < 8 else []
            if mm: e(mm[0])
            self.attn_vm(queue, nq)
            for x in self.set_exec(b): e(x)
            if mm: e(mm[1])
            s = S[b % 2]
            for k in range(8): e(f"v_max3_f32 v{m}, v{m}, v{s+2*k}, v{s+2*k+1}")
        e(f"v_mov_b32 v0, v{m}")
        e(f"v_permlane32_swap_b32 v{m}, v0")
        e(f"v_max_f32 v{m}, v{m}, v0")
    def pass2(self, hh, m, queue, nq):
        e = self.e
        MD, MO = vB, vB + 16; TF = vW; S = [vW + 16, vW + 32]; S2 = vA; O = vA + 16; P = [vT, vT + 8]
        tile = lambda b: S2 if b == 8 else S[b % 2]
        for r in range(16): e(f"v_sub_f32 v{S[0]+r}, v{MO+r}, v{m}")
        def smfma(b):
            d = vr(tile(b), 16); c = d if b in (0, 8) else vr(TF, 16)
            return [f"v_mfma_f32_32x32x16_bf16 {d}, {self.kfrag(hh,b,0)}, {vr(vQ+8*hh)}, {c}",
                    f"v_mfma_f32_32x32x16_bf16 {d}, {self.kfrag(hh,b,1)}, {vr(vQ+8*hh+4)}, {d}"]
        def pv(b):
            p = P[b % 2]
            c0 = "0" if b == 0 else vr(O, 16); s0 = "0" if b == 0 else vr(vSum)
            return [f"v_mfma_f32_32x32x16_bf16 {vr(O,16)}, {self.vfrag(hh,b,0)}, {vr(p)}, {c0}",
                    f"v_mfma_f32_32x32x16_bf16 {vr(O,16)}, {self.vfrag(hh,b,1)}, {vr(p+4)}, {vr(O,16)}",
                    f"v_mfma_f32_16x16x32_bf16 {vr(vSum)}, {vr(vSel)}, {vr(p)}, {s0}",
                    f"v_mfma_f32_16x16x32_bf16 {vr(vSum)}, {vr(vSel)}, {vr(p+4)}, {vr(vSum)}"]
        mm = smfma(0)
        e(f"v_sub_f32 v{TF}, 0, v{m}"); e(f"v_sub_f32 v{TF+1}, 0, v{m}")
        e(mm[0])
        for r in range(2, 8): e(f"v_sub_f32 v{TF+r}, 0, v{m}")
        e(mm[1])
        for r in range(8, 16): e(f"v_sub_f32 v{TF+r}, 0, v{m}")
        for r in range(16): e(f"v_sub_f32 v{S2+r}, v{MD+r}, v{m}")
        for r in range(16): e(f"v_mov_b32 v{vT+r}, 0")
        for b in range(9):
            mm = (smfma(b+1) if b < 8 else [])
            if b >= 1:
                if b-1 < 8: e.wait(vm=("kv", 1, hh, b-1))
                mm = mm + pv(b-1)
            s = tile(b); p = P[b % 2]
            va = []
            for k in range(8):
                va += [f"v_exp_f32 v{s+2*k}, v{s+2*k}", f"v_exp_f32 v{s+2*k+1}, v{s+2*k+1}"]
                if k >= 1: va.append(f"v_cvt_pk_bf16_f32 v{p+k-1}, v{s+2*k-2}, v{s+2*k-1}")
            va.append(f"v_cvt_pk_bf16_f32 v{p+7}, v{s+14}, v{s+15}")
            if mm: e(mm.pop(0))
            self.attn_vm(queue, nq)
            for x in self.set_exec(b): e(x)
            per = 4
            vi = 0
            while vi < len(va):
                for x in va[vi:vi+per]: e(x)
                vi += per
                if mm: e(mm.pop(0))
            for x in mm: e(x)
        for x in pv(8): e(x)
        e(f"s_lshl_b32 s{sT0}, s{sJ}, 11\n s_add_u32 s{sT0}, s{sT0}, s{sO}")
        if hh: e(f"s_add_u32 s{sT0}, s{sT0}, 32768")
        e(f"v_rcp_f32 v0, v{vSum}")
        for r in range(16): e(f"v_mul_f32 v{O+r}, v0, v{O+r}")
        for k in range(8): e(f"v_cvt_pk_bf16_f32 v{S2+k}, v{O+2*k}, v{O+2*k+1}")
        for k in range(4): e(f"v_permlane16_swap_b32 v{S2+k}, v{S2+4+k}")
        for tt in range(2):
            e.vm(f"buffer_store_dwordx4 {vr(S2+4*tt)}, v{vL16}, {srd(SRD_WS)}, s{sT0} offen" + (" offset:1024" if tt else "") + " sc1", "pub")
    def setup(self):
        e = self.e
        e("s_cmp_ge_u32 s2, 256\n s_cbranch_scc1 Lend")
        e("s_load_dwordx16 s[48:63], s[0:1], 0\n s_load_dwordx2 s[64:65], s[0:1], 64")
        e(f"v_lshrrev_b32 v1, 6, v0\n v_and_b32 v0, 63, v0\n v_readfirstlane_b32 s{sW}, v1")
        e(f"s_and_b32 s{sT0}, s2, 7\n s_lshr_b32 s{sT1}, s2, 3")
        e(f"s_lshr_b32 s{sG}, s{sT0}, 1\n s_lshl_b32 s{sG}, s{sG}, 2\n s_lshr_b32 s3, s{sT1}, 3\n s_add_u32 s{sG}, s{sG}, s3")
        e(f"s_and_b32 s{sJ}, s{sT0}, 1\n s_lshl_b32 s{sJ}, s{sJ}, 3\n s_and_b32 s3, s{sT1}, 7\n s_add_u32 s{sJ}, s{sJ}, s3")
        e(f"s_lshl_b32 s{sTB}, s{sG}, 2\n s_add_u32 s{sTB}, s{sTB}, s{sW}")
        e(f"s_lshl_b32 s{sLdsW}, s{sW}, 12\n s_mov_b32 s{sLayer}, 0\n s_mov_b32 s{sFl}, 0\n s_mov_b32 s{sSpin}, 0")
        e("s_waitcnt lgkmcnt(0)")
        for (d, p, n) in [(SRD_X, 48, 2048*1024*2), (SRD_QKV, 50, 1024*3072*2), (SRD_WO, 52, 1024*1024*2), (SRD_W1, 56, 1024*3584*2),
                          (SRD_W2, 58, 3584*1024*2), (SRD_OUT, 60, 2048*1024*2), (SRD_DBG, 62, 256), (SRD_WS, 64, WS_BYTES)]:
            e(f"s_mov_b32 s{d}, s{p}\n s_and_b32 s{d+1}, s{p+1}, 0xffff\n s_mov_b32 s{d+2}, {n}\n s_mov_b32 s{d+3}, 0x00020000")
        e(f"v_and_b32 v44, 15, v0\n v_lshrrev_b32 v45, 4, v0\n v_lshrrev_b32 v46, 3, v0")
        e(f"v_lshlrev_b32 v{vL16}, 4, v0\n v_add_u32 v{vL16b}, 4096, v{vL16}")
        e(f"v_cmp_eq_u32 vcc, 0, v0\n v_mov_b32 v48, {OOB}\n v_cndmask_b32 v{vFlagOff}, v48, v0, vcc")
        e(f"s_lshl_b32 s{sT0}, s{sTB}, 16\n s_lshl_b32 s{sT1}, s{sJ}, 7\n s_add_u32 s{sT0}, s{sT0}, s{sT1}")
        e(f"v_and_b32 v49, 7, v0\n v_lshlrev_b32 v49, 4, v49\n v_lshl_add_u32 v50, v46, 11, v49")
        e(f"s_add_u32 m0, s{sLdsW}, {L_STG}")
        for i in range(4):
            e.vm(f"buffer_load_dwordx4 v50, {srd(SRD_X)}, s{sT0} offen" + (f" offset:{i*1024}" if i else "") + " lds", "x0")
            if i < 3: e(f"s_add_u32 s{sT0}, s{sT0}, {8*2048 - 1024}")
        e(f"s_lshl_b32 s{sT0}, s{sTB}, 4\n v_add_u32 v51, s{sT0}, v46")
        e(f"v_mul_u32_u24 v52, 6144, v51\n v_add_u32 v52, v52, v49\n v_mul_u32_u24 v53, 7168, v51\n v_add_u32 v53, v53, v49")
        tiles = [(SRD_QKV, 52, 2048, 6144), (SRD_QKV, 52, 4096, 6144), (SRD_QKV, 52, 0, 6144), (SRD_W1, 53, 0, 7168), (SRD_W1, 53, 2048, 7168), (SRD_W1, 53, 4096, 7168), (SRD_W1, 53, 6144, 7168)]
        for t, (sr, va, col, rs) in enumerate(tiles):
            if t == 6: e(f"s_lshr_b32 s{sT1}, s{sJ}, 1\n s_lshl_b32 s{sT1}, s{sT1}, 7")
            for i in range(2):
                e(f"s_add_u32 s{sT0}, s{sT1}, {col + i*8*rs}")
                e.vm(f"buffer_load_dwordx4 {ar(8*t+4*i)}, v{va}, {srd(sr)}, s{sT0} offen", ("csl", t))
        e(f"s_lshl_b32 s{sFlagRow}, s{sTB}, 11\n s_lshl_b32 s{sT1}, s{sJ}, 7\n s_add_u32 s{sFlagOwn}, s{sFlagRow}, s{sT1}\n v_mov_b32 v{vFlagVal}, 0")
        e.vm(f"buffer_store_dword v{vFlagVal}, v{vFlagOff}, {srd(SRD_WS)}, s{sFlagOwn} offen sc1", "pub")
        e(f"s_lshl_b32 s{sT0}, s{sG}, 1\n s_xor_b32 s{sT0}, s{sT0}, s{sJ}\n s_and_b32 s3, s{sT0}, 7")
        for st in range(8): e(f"s_xor_b32 s{sRot8+st}, s3, {st}\n s_lshl_b32 s{sRot8+st}, s{sRot8+st}, 13")
        e(f"s_lshr_b32 s{sT0}, s3, 1")
        for st in range(4): e(f"s_xor_b32 s{sRot4+st}, s{sT0}, {st}\n s_lshl_b32 s{sRot4+st}, s{sRot4+st}, 13")
        e(f"s_lshl_b32 s{sT0}, s{sTB}, 16")
        for (d, r) in [(sXA, R_XA), (sXB, R_XB), (sO, R_O)]: e(f"s_add_u32 s{d}, s{sT0}, {R0 + r}")
        e(f"s_mul_i32 s{sH}, s{sTB}, 229376\n s_add_u32 s{sH}, s{sH}, {R0 + R_H}")
        e(f"s_lshl_b32 s{sT0}, s{sTB}, 12\n s_add_u32 s{sStA}, s{sT0}, {R0 + R_STA}\n s_add_u32 s{sStB}, s{sT0}, {R0 + R_STB}")
        e(f"s_lshl_b32 s{sT1}, s{sJ}, 19\n s_add_u32 s{sT1}, s{sT1}, {R0 + R_KV}")
        e(f"s_lshl_b32 s{sT0}, s{sTB}, 13\n s_add_u32 s{sKVown}, s{sT0}, s{sT1}")
        for b in range(8):
            e(f"s_sub_i32 s{sT0}, s{sTB}, {8-b}\n s_max_i32 s{sT0}, s{sT0}, 0\n s_lshl_b32 s{sT0}, s{sT0}, 13\n s_add_u32 s{sKVb+b}, s{sT0}, s{sT1}")
        e(f"s_sub_i32 s{sNinv}, 8, s{sTB}\n s_max_i32 s{sNinv}, s{sNinv}, 0")
        e(f"s_mov_b32 s{sK}, {hex(f2u(-LOG2E))}")
        for (d, m) in [(sM1, 0x22222222), (sM2, 0x44444444), (sM3, 0x88888888)]: e(f"s_mov_b32 s{d}, {hex(m)}\n s_mov_b32 s{d+1}, {hex(m)}")
        e(f"v_lshrrev_b32 v{vPollX}, 2, v0\n v_lshlrev_b32 v{vPollX}, 7, v{vPollX}")
        e(f"s_sub_i32 s{sT0}, s{sTB}, 8\n v_add_u32 v48, s{sT0}, v46\n v_max_i32 v48, 0, v48\n v_lshlrev_b32 v48, 11, v48\n s_lshl_b32 s{sT1}, s{sJ}, 7\n v_add_u32 v{vPollKV}, s{sT1}, v48")
        e(f"v_lshlrev_b32 v48, 4, v45\n v_add_u32 v{vCsT}, {L_CS}, v48\n v_lshlrev_b32 v54, 2, v44\n v_add_u32 v{vCsV}, {L_CS}, v54")
        e(f"s_lshl_b32 s{sT0}, s{sW}, 9\n s_add_u32 s{sT0}, s{sT0}, {L_SCR}\n v_add_u32 v{vStW}, s{sT0}, v54\n v_add_u32 v{vStR}, s{sT0}, v48")
        e(f"v_lshrrev_b32 v48, 2, v44\n v_cmp_eq_u32 vcc, v48, v45\n v_lshlrev_b32 v54, 4, v44\n v_mov_b32 v55, {OOB}\n v_cndmask_b32 v{vStatSt}, v55, v54, vcc")
        e(f"v_and_b32 v48, 31, v0\n v_lshrrev_b32 v54, 5, v0\n v_lshlrev_b32 v54, 2, v54\n v_sub_u32 v48, v48, v54\n v_cvt_f32_i32 v{vFD}, v48")
        e(f"v_lshrrev_b32 v48, 2, v44\n v_lshl_add_u32 v48, v45, 2, v48")
        e(f"v_bfe_u32 v54, v48, 1, 2\n v_and_b32 v55, 3, v0\n v_lshlrev_b32 v55, 3, v55\n v_lshl_add_u32 v55, v48, 7, v55")
        for q in range(4):
            e(f"v_xor_b32 v56, {q}, v54\n v_lshl_add_u32 v{vRd+q}, v56, 5, v55\n v_add_u32 v{vRd+4+q}, 0x10000, v{vRd+q}")
        e(f"v_lshlrev_b32 v48, 1, v45\n v_and_b32 v54, 7, v0\n v_xor_b32 v54, v54, v48\n v_lshlrev_b32 v47, 4, v54")
        e(f"s_lshl_b32 s{sT1}, s{sJ}, 7\n v_add_u32 v55, s{sT1}, v47")
        e(f"s_lshl_b32 s{sT0}, s{sW}, 5\n v_add_u32 v56, s{sT0}, v46")
        e(f"v_mul_u32_u24 v57, 6144, v56\n v_add_u32 v{vBQ}, v57, v55\n v_mul_u32_u24 v57, 7168, v56\n v_add_u32 v{vB1}, v57, v55")
        e(f"v_lshl_add_u32 v{vB2}, v56, 11, v55")
        e(f"v_lshrrev_b32 v57, 5, v0\n v_lshlrev_b32 v57, 4, v57\n v_and_b32 v58, 3, v46\n s_lshl_b32 s{sT0}, s{sW}, 6\n v_add3_u32 v57, v57, v58, s{sT0}\n v_lshl_add_u32 v{vBO}, v57, 11, v55")
        e(f"s_and_b32 s{sT0}, s3, 1\n v_lshrrev_b32 v57, 2, v54\n v_xor_b32 v57, s{sT0}, v57\n v_lshl_add_u32 v57, v57, 7, v56\n v_mul_u32_u24 v57, 7168, v57")
        e(f"v_and_b32 v58, 3, v54\n v_lshlrev_b32 v58, 4, v58\n s_lshl_b32 s{sT1}, s{sJ}, 6\n s_add_u32 s{sT1}, s{sT1}, 6144\n v_add3_u32 v{vB1h}, v57, v58, s{sT1}")
        e(f"v_bfe_u32 v48, v0, 2, 1\n v_and_b32 v54, 1, v45\n v_cmp_eq_u32 vcc, v48, v54\n v_mov_b32 v{vOnes}, 0x3f803f80")
        for k in range(1, 4): e(f"v_mov_b32 v{vOnes+k}, 0x3f803f80")
        for k in range(4): e(f"v_cndmask_b32 v{vSel+k}, 0, v{vOnes}, vcc")
    def phase0(self):
        e = self.e
        e(f"v_lshlrev_b32 v48, 7, v44\n v_lshl_add_u32 v48, v45, 3, v48\n s_add_u32 s{sT0}, s{sLdsW}, {L_STG}\n v_add_u32 v48, s{sT0}, v48")
        e.wait(vm="x0")
        for kp in range(2):
            for tt in range(2):
                for jj in range(2):
                    e.ds(f"ds_read_b64 {vr(vK+8*kp+4*tt+2*jj,2)}, v48 offset:{tt*2048 + kp*64 + jj*32}", "x0r")
        e(f"v_and_b32 v54, 7, v0")
        for k in range(4):
            e(f"v_cmp_eq_u32 vcc, {2*k}, v54\n v_mov_b32 v55, 0x3f80\n v_cndmask_b32 v{60+k}, 0, v55, vcc")
            e(f"v_cmp_eq_u32 vcc, {2*k+1}, v54\n v_mov_b32 v55, 0x3f800000\n v_cndmask_b32 v{60+k}, v{60+k}, v55, vcc")
        e.wait(lg="x0r")
        self.publish_x(sXA, 0, sStA, 0, packed=True)
        for kp in range(2):
            for tt in range(2):
                for jj in range(2):
                    for k in range(2):
                        s = vK + 8*kp + 4*tt + 2*jj + k; d = vX + 8*(2*kp+jj) + 4*tt + 2*k
                        e(f"v_lshlrev_b32 v{d}, 16, v{s}\n v_and_b32 v{d+1}, 0xffff0000, v{s}")
        for t in range(7):
            e.wait(vm=("csl", t))
            e(f"v_mfma_f32_16x16x32_bf16 {vr(vA+4*t)}, v[60:63], {ar(8*t)}, 0")
            e(f"v_mfma_f32_16x16x32_bf16 {vr(vA+4*t)}, v[60:63], {ar(8*t+4)}, {vr(vA+4*t)}")
        e(f"v_lshrrev_b32 v48, 3, v44\n v_mul_u32_u24 v48, 1792, v48\n v_and_b32 v54, 7, v0\n v_lshl_add_u32 v48, v54, 5, v48")
        e(f"v_and_b32 v54, 1, v45\n v_lshl_add_u32 v48, v54, 4, v48\n s_add_u32 s{sT0}, s{sLdsW}, {L_STG}\n v_add_u32 v48, s{sT0}, v48")
        for t in range(7): e.ds(f"ds_write_b128 v48, {vr(vA+4*t)} offset:{t*256}", "csw")
        e(f"v_and_b32 v54, 31, v0\n v_min_u32 v54, 27, v54\n s_mul_i32 s{sT0}, s{sW}, 28\n v_add_u32 v54, s{sT0}, v54\n v_lshlrev_b32 v54, 4, v54")
        e(f"v_lshrrev_b32 v55, 5, v0\n v_mul_u32_u24 v56, 1792, v55\n v_add_u32 v56, v56, v54\n v_add_u32 v57, {L_STG}, v56")
        e.wait(lg="csw")
        e("s_barrier")
        for w in range(4): e.ds(f"ds_read_b128 {vr(vB+4*w)}, v57 offset:{w*4096}", "csr")
        e.wait(lg="csr")
        def red4():
            for k in range(4): e(f"v_add_f32 v{vB+k}, v{vB+k}, v{vB+4+k}\n v_add_f32 v{vB+8+k}, v{vB+8+k}, v{vB+12+k}")
            for k in range(4): e(f"v_add_f32 v{vB+k}, v{vB+k}, v{vB+8+k}")
        def half():
            for k in range(4): e(f"v_mov_b32 v{vB+4+k}, v{vB+k}")
            for k in range(4): e(f"v_permlane32_swap_b32 v{vB+k}, v{vB+4+k}")
            for k in range(4): e(f"v_add_f32 v{vB+k}, v{vB+k}, v{vB+4+k}")
        red4(); half()
        e(f"s_lshl_b32 s{sT0}, s{sJ}, 4\n s_add_u32 s{sT1}, s{sT0}, s{sG}\n s_mul_i32 s{sT1}, s{sT1}, 1792\n s_add_u32 s{sT1}, s{sT1}, {WS_CSP}")
        e.vm(f"buffer_store_dwordx4 {vr(vB)}, v54, {srd(SRD_WS)}, s{sT1} offen sc1", "pub")
        self.ring_free_upto = 7
        for s in range(0, 3):
            for it in self.dma_items(s): e.item(it)
        e.wait(vm="pub")
        e("s_barrier")
        skip = e.newlabel("skip")
        e(f"s_lshl_b32 s{sT0}, s{sG}, 4\n v_mov_b32 v48, 1\n s_cmp_lg_u32 s{sW}, 0\n s_cbranch_scc1 {skip}")
        e.raw(f"buffer_atomic_add v48, v{vFlagOff}, {srd(SRD_DBG)}, s{sT0} offen sc1")
        e.label(skip)
        for s in range(3, 8):
            for it in self.dma_items(s): e.item(it)
        e(f"v_lshrrev_b32 v48, 2, v0\n v_lshlrev_b32 v48, 4, v48")
        lp = e.newlabel("p0poll"); ok = e.newlabel("p0ok")
        e.label(lp)
        e.vm(f"buffer_load_dword v{vPoll}, v48, {srd(SRD_DBG)}, 0 offen sc1")
        e(f"s_add_u32 s{sSpin}, s{sSpin}, 1\n s_cmp_ge_u32 s{sSpin}, 0x40000\n s_cbranch_scc1 Lend")
        e.wait(vm="all")
        e(f"v_cmp_gt_u32 vcc, 16, v{vPoll}\n s_cbranch_vccz {ok}\n s_sleep 8\n s_branch {lp}")
        e.label(ok)
        e(f"s_mul_i32 s{sT1}, s{sJ}, {16*1792}\n s_add_u32 s{sT1}, s{sT1}, {WS_CSP}")
        for i in range(8):
            e.vm(f"buffer_load_dwordx4 {vr(vA+4*i)}, v56, {srd(SRD_WS)}, s{sT1} offen sc1", "csg")
            if i < 7: e(f"s_add_u32 s{sT1}, s{sT1}, {2*1792}")
        e.wait(vm="csg")
        for k in range(16): e(f"v_add_f32 v{vB+k}, v{vA+k}, v{vA+16+k}")
        red4(); half()
        e(f"v_add_u32 v54, {L_CS}, v54")
        e.ds(f"ds_write_b128 v54, {vr(vB)}", "csw2")
        e.wait(lg="all")
    def layer(self):
        e = self.e; sp = self.spread
        e.label("Llayer")
        self.stamp(0)
        steps = self.chunk_steps(vA, xtag="xa") + self.chunk_steps(vB, swap=True) + self.chunk_steps(vA)
        fill = [[] for _ in steps]
        self.x_arrival(fill, sXA, "xa", [(sRot8+st, sXA) for st in range(8)])
        self.w_schedule_head(fill, 0, 23)
        sp(fill, self.stats_load_items(sStA), 18, 22)
        sp(fill, self.stats_items("qkv"), 26, 34)
        sp(fill, self.kq_epilogue(vA, 0, vK, vC1) + self.kv_stores(vK, vL16, "kst"), 34, 54)
        sp(fill, self.flag_items(1, "kst"), 60, 61)
        sp(fill, self.v_epilogue(vB) + self.kv_stores(vV, vL16b, "vst"), 65, 81)
        sp(fill, [self.poll_load("kv", "poll")], 68, 69)
        sp(fill, [self.poll_check("kv", 1, "poll")], 73, 74)
        for b in range(8): sp(fill, self.kv_load_items(0, 0, b), 74 + b, 75 + b)
        for b in range(8): sp(fill, self.kv_load_items(0, 1, b), 82 + b, 83 + b)
        sp(fill, self.flag_items(2, "vst"), 87, 88)
        sp(fill, self.mask_items(), 82, 95)
        for k, s in enumerate((24, 25, 26)): sp(fill, self.dma_items(s), 90 + 2*k, 92 + 2*k)
        qe = self.kq_epilogue(vA, 2, vQ, vSum)
        sp(fill, qe[:4] + [f"v_mul_f32 v{vSum+tt}, {hex(f2u(LOG2E/math.sqrt(32.0)))}, v{vC1+tt}" for tt in range(2)], 94, 96)
        self.run("qkv", 0, steps, fill)
        self.stamp(1)
        e.item(self.poll_load("kv", "poll"))
        e("s_barrier"); self.ring_free_upto = 31
        for it in qe[4:]: e.item(it)
        e.item(self.poll_check("kv", 2, "poll"))
        self.stamp(2)
        q = []
        for hh in range(2):
            for b in range(8): q += self.kv_load_items(1, hh, b)
        for s in range(27, 32): q += self.dma_items(s)
        self.pass1(0, vM, q, 2)
        self.pass1(1, vPoll, q, 2)
        e(f"v_mov_b32 v{vFlagVal}, v{vPoll}")
        self.pass2(0, vM, q, 3)
        self.pass2(1, vFlagVal, q, 3)
        assert not q
        self.stamp(3)
        self.transition([], 4)
        self.stamp(4)
        steps = self.chunk_steps(vX, xtag="xo", inplace=True)
        fill = [[] for _ in steps]
        e(f"s_add_u32 s{sXcur}, s{sO}, 32768")
        self.x_arrival(fill, sO, "xo", [(sRot4 + st % 4, sO if st < 4 else sXcur) for st in range(8)])
        self.run("wo", 24, steps, fill)
        self.stamp(5)
        self.publish_x(sXB, 0, sStB, 0)
        self.transition(list(range(32, 40)), 5)
        self.stamp(6)
        steps = self.chunk_steps(vA, xtag="xb") + self.chunk_steps(vB) + self.chunk_steps(vA) + self.half_steps(vB) \
              + self.chunk_steps(vX, xtag="h", inplace=True, npos=112)
        fill = [[] for _ in steps]
        self.x_arrival(fill, sXB, "xb", [(sRot8+st, sXB) for st in range(8)])
        self.w_schedule_head(fill, 32, 61)
        w2 = []
        for s in range(62, 88):
            t0 = 94 + (s-62)*118//26; t1 = 94 + (s-61)*118//26
            sp(fill, self.dma_items(s), t0, t1)
        sp(fill, self.stats_load_items(sStB), 18, 22)
        sp(fill, self.stats_items("ffn"), 26, 34)
        def hoff(c):
            if c < 3: return [f"s_lshl_b32 s{sT1}, s{sJ}, 12", f"s_add_u32 s{sT1}, s{sT1}, s{sH}"] + ([f"s_add_u32 s{sT1}, s{sT1}, {c*65536}"] if c else [])
            return [f"s_lshl_b32 s{sT1}, s{sJ}, 11", f"s_add_u32 s{sT1}, s{sT1}, s{sH}", f"s_add_u32 s{sT1}, s{sT1}, {3*65536}"]
        sp(fill, self.silu_epilogue(vA, 3, 4, hoff(0), "h0"), 34, 64)
        sp(fill, self.silu_epilogue(vB, 4, 4, hoff(1), "h1"), 65, 96)
        sp(fill, self.silu_epilogue(vA, 5, 4, hoff(2), "h2"), 97, 124)
        sp(fill, self.silu_epilogue(vB, 6, 2, hoff(3), "h3"), 124, 138)
        sp(fill, self.flag_items(6, "h0"), 72, 73)
        sp(fill, self.flag_items(7, "h1"), 104, 105)
        sp(fill, self.flag_items(8, "h3"), 146, 147)
        for (tl, tc, val) in [(90, 98, 6), (124, 132, 7), (158, 166, 8)]:
            sp(fill, [self.poll_load("x", "poll")], tl, tl+1)
            sp(fill, [self.poll_check("x", val, "poll")], tc, tc+1)
        for st in range(28):
            blk = st // 8
            tab = sRot8 + st % 8 if blk < 3 else sRot4 + st % 4
            it = self.xload_items(tab, sXcur, 4*st, "h")
            if st % 8 == 0: it = [f"s_add_u32 s{sXcur}, s{sH}, {blk*65536}"] + it
            sp(fill, it, 100 + st*120//28, 100 + (st+1)*120//28)
        if self.stamps:
            sp(fill, [lambda e_: self.stamp(7)], 32, 33); sp(fill, [lambda e_: self.stamp(8)], 96, 97); sp(fill, [lambda e_: self.stamp(9)], 112, 113)
        self.run("ffn", 32, steps, fill)
        self.stamp(10)
        e(f"s_cmp_lg_u32 s{sLayer}, 0\n s_cbranch_scc1 Lfinal")
        self.publish_x(sXA, LAYER, sStA, LAYER)
        self.transition(list(range(88, 96)), 9)
        self.stamp(11)
        self.dump_stamps()
        e.wait(vm="all")
        for s in [sXA, sXB, sO, sH, sKVown, sStA, sStB] + [sKVb+b for b in range(8)]: e(f"s_add_u32 s{s}, s{s}, {LAYER}")
        e(f"s_mov_b32 s{sLayer}, 1\n s_mov_b32 s{sFl}, 16\n s_branch Llayer")
        e.label("Lfinal")
        e("s_nop 7")
        self.pack_x()
        e(f"v_lshrrev_b32 v48, 4, v{vL16}\n v_and_b32 v49, 15, v48\n v_lshlrev_b32 v49, 11, v49\n v_bfe_u32 v50, v48, 4, 1\n v_lshl_add_u32 v49, v50, 5, v49")
        e(f"v_lshrrev_b32 v50, 5, v48\n v_lshl_add_u32 v49, v50, 4, v49")
        e(f"s_lshl_b32 s{sT0}, s{sTB}, 16\n s_lshl_b32 s{sT1}, s{sJ}, 7\n s_add_u32 s{sT0}, s{sT0}, s{sT1}\n s_add_u32 s{sT1}, s{sT0}, 32768")
        for kp in range(2):
            for tt in range(2):
                p = vK + 8*kp + 4*tt
                for k in range(2): e(f"v_permlane16_swap_b32 v{p+k}, v{p+2+k}")
                e.vm(f"buffer_store_dwordx4 {vr(p)}, v49, {srd(SRD_OUT)}, s{sT1 if tt else sT0} offen" + (" offset:64" if kp else ""))
        self.stamp(11)
        self.dump_stamps()
        e.label("Lend")
        e("s_endpgm")
    def build(self):
        self.setup()
        self.stamp(12)
        self.phase0()
        self.layer()
        body = self.e.finish()
        hdr = open("cdna_kernels/" + KNAME[:-7] + ".s.ref").read().split("; Override launch")[0] if False else ""
        out = [f"; @launch grid=(256,1,1) block=(256,1,1) lds={LDS_BYTES}",
               "; Generated by a hand-written generator script: persistent fused kernel, one workgroup per CU.",
               '.amdgcn_target "amdgcn-amd-amdhsa--gfx950"', ".text", f".globl {KNAME}", ".p2align 8", f".type {KNAME},@function", f"{KNAME}:"]
        out += body
        out += ['.section .rodata,"a"', ".p2align 6", f".amdhsa_kernel {KNAME}", "  .amdhsa_next_free_vgpr 512", "  .amdhsa_next_free_sgpr 102",
                "  .amdhsa_accum_offset 256", "  .amdhsa_group_segment_fixed_size 0", "  .amdhsa_kernarg_size 72", "  .amdhsa_user_sgpr_count 2",
                "  .amdhsa_user_sgpr_kernarg_segment_ptr 1", "  .amdhsa_system_sgpr_workgroup_id_x 1", ".end_amdhsa_kernel"]
        return "\n".join(out) + "\n"

if __name__ == "__main__":
    path = sys.argv[1]
    stamps = "stamps" in sys.argv[2:]
    opts = {}
    for a in sys.argv[2:]:
        if "=" in a:
            k, v = a.split("="); opts[k] = int(v)
    g = Gen(stamps, opts)
    txt = g.build()
    open(path, "w").write(txt)
    print("lines", txt.count("\n"), "bytes", len(txt), "nops", g.e.nnops, "vm_max", g.e.vm_max)
```

```python
import re

def regs_of(op):
    op = op.strip()
    neg = op.lstrip("-")
    if neg.startswith("abs(") or neg.startswith("|"):
        neg = neg.replace("abs(", "").replace(")", "").replace("|", "")
    m = re.fullmatch(r"([vas])(\d+)", neg)
    if m: return {(m.group(1), int(m.group(2)))}
    m = re.fullmatch(r"([vas])\[(\d+):(\d+)\]", neg)
    if m: return {(m.group(1), i) for i in range(int(m.group(2)), int(m.group(3)) + 1)}
    if neg == "vcc": return {("s", 106), ("s", 107)}
    if neg == "exec": return {("s", 126), ("s", 127)}
    if neg == "m0": return {("s", 124)}
    return set()

TRANS = ("v_exp_f32", "v_log_f32", "v_rcp_f32", "v_rsq_f32", "v_sqrt_f32", "v_sin_f32", "v_cos_f32")

class I:
    __slots__ = ("text", "op", "ops", "kind", "w", "r", "srcA", "srcB", "srcC", "passes", "data", "states", "lds", "wide", "blk")
    def __init__(self, text):
        self.text = text
        t = text.split(";")[0].strip()
        self.kind = "other"; self.w = set(); self.r = set(); self.passes = 0; self.data = set(); self.states = 1
        self.srcA = self.srcB = self.srcC = set(); self.lds = False; self.wide = False
        if t.endswith(":") or t.startswith(".") or not t:
            self.kind = "label"; self.op = ""; self.states = 0; return
        parts = t.split(None, 1)
        self.op = op = parts[0]
        rest = parts[1] if len(parts) > 1 else ""
        ops = [x.strip() for x in rest.split(",")] if rest else []
        if ops:
            last = ops[-1].split()
            mods = last[1:]
            ops[-1] = last[0]
        else:
            mods = []
        self.ops = ops
        R = [regs_of(o) for o in ops]
        if op == "s_nop":
            self.kind = "nop"; self.states = int(ops[0], 0) + 1
        elif op.startswith("v_mfma"):
            self.kind = "mfma"; self.w = R[0]; self.srcA, self.srcB, self.srcC = R[1], R[2], R[3]
            self.r = R[1] | R[2] | R[3]
            self.passes = 8 if "32x32x16" in op else 4
        elif op.startswith("v_"):
            self.kind = "valu"
            base = op.replace("_e32", "").replace("_e64", "")
            if base.startswith("v_permlane"):
                self.w = R[0] | R[1]; self.r = R[0] | R[1]; self.kind = "perm"
            elif base in ("v_readfirstlane_b32", "v_readlane_b32"):
                self.w = R[0]; self.r = set().union(*R[1:]); self.kind = "rdlane"
            elif base.startswith("v_add_co") or base.startswith("v_addc_co") or base.startswith("v_sub_co"):
                self.w = R[0] | R[1]; self.r = set().union(*R[2:])
            else:
                self.w = R[0]; self.r = set().union(*R[1:]) if len(R) > 1 else set()
                if base.startswith("v_fmac") or base.startswith("v_dot2c"): self.r = self.r | R[0]
                if base in TRANS: self.kind = "trans"
                if any(m.startswith("row_") or m.startswith("quad_perm") for m in mods): self.kind = "dpp"; self.r = self.r | R[0]
        elif op.startswith("buffer_"):
            self.kind = "vmem"
            self.lds = "lds" in mods
            if op.startswith("buffer_load"):
                if self.lds: self.r = set().union(*R) | {("s", 124)}
                else: self.w = R[0]; self.r = set().union(*R[1:])
            elif op.startswith("buffer_store") or op.startswith("buffer_atomic"):
                self.r = set().union(*R); self.data = R[0]; self.wide = op.endswith("x4") or op.endswith("x3")
        elif op.startswith("ds_"):
            self.kind = "ds"
            if op.startswith("ds_read") or op.startswith("ds_bpermute"):
                self.w = R[0]; self.r = set().union(*R[1:])
            else:
                self.r = set().union(*R)
        elif op.startswith("s_"):
            self.kind = "salu"
            if op.startswith(("s_cmp", "s_cbranch", "s_branch", "s_waitcnt", "s_barrier", "s_sleep", "s_endpgm", "s_setprio", "s_bitcmp")):
                self.r = set().union(*R) if R else set()
            else:
                self.w = R[0] if R else set(); self.r = set().union(*R[1:]) if len(R) > 1 else set()

VALUK = ("valu", "trans", "perm", "rdlane", "dpp")
def vg(s): return {x for x in s if x[0] in "va"}
def sg(s): return {x for x in s if x[0] == "s"}

def need(p, c):
    n = 0
    if p.kind in VALUK:
        pv = vg(p.w); ps = sg(p.w)
        if c.kind == "mfma" and pv & c.r: n = max(n, 2)
        if c.kind in ("perm", "dpp") and pv & c.r: n = max(n, 2)
        if c.kind == "rdlane" and pv & c.r: n = max(n, 1)
        if p.kind == "trans" and c.kind in VALUK and pv & c.r: n = max(n, 1)
        if ps:
            if c.kind in VALUK and ps & c.r: n = max(n, 2 if c.kind != "rdlane" else 4)
            if c.kind == "vmem" and ps & c.r: n = max(n, 5)
            if c.kind == "salu" and ps & c.r and not c.op.startswith("s_cbranch"): n = max(n, 1)
    if p.kind == "mfma":
        big = 12 if p.passes == 8 else 8
        if c.kind == "mfma":
            if p.w & (c.srcA | c.srcB): n = max(n, big)
            if p.w & c.srcC and not (p.w == c.srcC and p.passes == c.passes): n = max(n, big - 2)
            if p.w & c.w and not (p.w == c.srcC and p.passes == c.passes): n = max(n, big - 2)
        elif c.kind in VALUK or c.kind in ("vmem", "ds"):
            if p.w & (c.r | c.w): n = max(n, big)
            if c.kind in VALUK and p.srcC & c.w: n = max(n, 7 if p.passes == 8 else 3)
    if p.kind == "salu" and ("s", 124) in p.w and c.kind == "vmem" and c.lds: n = max(n, 1)
    if p.kind == "vmem" and p.wide and p.data & c.w and (c.kind in VALUK or c.kind in ("mfma", "ds", "vmem")): n = max(n, 2)
    return n

class E:
    def __init__(self):
        self.ins = []
        self.vm_n = 0; self.vm_done = 0; self.vm_tag = {}
        self.lg_n = 0; self.lg_done = 0; self.lg_tag = {}
        self.uid = 0
        self.tail = []
    def raw(self, s): self.ins.append(s)
    def __call__(self, s):
        for l in s.split("\n"):
            l = l.strip()
            if l:
                assert not l.startswith(("buffer_", "ds_")), "use vm()/ds(): " + l
                self.ins.append(l)
    def label(self, n): self.ins.append(n + ":")
    def newlabel(self, b):
        self.uid += 1; return f"L{b}{self.uid}"
    def vm(self, s, tag=None):
        self.ins.append(s); self.vm_n += 1
        self.vm_max = max(getattr(self, "vm_max", 0), self.vm_n - self.vm_done)
        if tag is not None: self.vm_tag[tag] = self.vm_n
    def ds(self, s, tag=None):
        self.ins.append(s); self.lg_n += 1
        if tag is not None: self.lg_tag[tag] = self.lg_n
    def wait(self, vm=None, lg=None):
        parts = []
        if vm is not None:
            tags = vm if isinstance(vm, list) else [vm]
            pos = self.vm_n if "all" in tags else max(self.vm_tag[t] for t in tags)
            if pos > self.vm_done or "all" in tags:
                n = self.vm_n - pos
                parts.append(f"vmcnt({min(n, 63)})")
                self.vm_done = max(self.vm_done, pos)
        if lg is not None:
            tags = lg if isinstance(lg, list) else [lg]
            pos = self.lg_n if "all" in tags else max(self.lg_tag[t] for t in tags)
            if pos > self.lg_done or "all" in tags:
                n = self.lg_n - pos
                parts.append(f"lgkmcnt({min(n, 15)})")
                if n > 15: pos = self.lg_n - 15
                self.lg_done = max(self.lg_done, pos)
        if parts: self.ins.append("s_waitcnt " + " ".join(parts))
    def item(self, it):
        if isinstance(it, str): self(it)
        elif callable(it): it(self)
        elif isinstance(it, list):
            for x in it: self.item(x)
        elif it[0] == "vm": self.vm(it[1], it[2] if len(it) > 2 else None)
        elif it[0] == "ds": self.ds(it[1], it[2] if len(it) > 2 else None)
        elif it[0] == "wait": self.wait(it[1], it[2] if len(it) > 2 else None)
        else: raise ValueError(it)
    def finish(self, verbose=False):
        out = []; parsed = []; nn = 0; blk = 0; nb = 0
        for s in self.ins + self.tail:
            if s == "; opt-begin": nb += 1; blk = nb; continue
            if s == "; opt-end": blk = 0; continue
            c = I(s); c.blk = blk
            if c.kind != "label":
                req = 0
                for skip in (False, True):
                    dist = 0
                    for p in reversed(parsed):
                        if dist >= 12: break
                        if skip and p.blk and p.blk != blk: continue
                        k = need(p, c)
                        if k - dist > req: req = k - dist
                        dist += p.states
                if req > 0:
                    nop = I(f"s_nop {req-1}"); nop.blk = blk; parsed.append(nop); out.append(nop.text); nn += 1
                    if verbose: print("nop", req, "before", s)
            parsed.append(c); out.append(s)
        self.nnops = nn
        return out
```

```python
import sys, math, struct
from emit import E

KNAME = "interleave_layers__sliding_block__dense_activation_silu__prompt_kernel"
def f2u(x): return struct.unpack("<I", struct.pack("<f", x))[0]
LOG2E = 1.4426950408889634

WS_FLAGS = 0
WS_CSP = 0x20000
WS_STAMP = 0xF000000
R0 = 0x100000; LAYER = 0x4000000
R_STA = 0x0; R_STB = 0x40000; R_XA = 0x100000; R_XB = 0x500000; R_O = 0x900000; R_KV = 0xD00000; R_H = 0x1500000; R_P = 0x2300000
WS_BYTES = 268435456
OOB = 0x40000000
L_CS = 131072; L_SCR = 133120; L_STG = 135168; STGW = 7168; LDS_BYTES = 163840
SRD_WS, SRD_QKV, SRD_WO, SRD_W1, SRD_W2, SRD_X, SRD_OUT, SRD_DBG = 4, 8, 12, 16, 20, 24, 28, 32
sW, sG, sJ, sTB, sLayer, sLdsW, sOffW, sOffX, sFl, sT0, sT1, sSpin = 36, 37, 38, 39, 40, 41, 42, 43, 44, 45, 46, 47
sRot8 = 48
sRot4 = 56
sKVb = 60
sLdsW2, sPf = 62, 63
sHF = 64
sHrow, sHcol = 0, 1
sXA, sXB, sO, sH, sKVown, sStA, sStB = 68, 69, 70, 71, 72, 73, 74
sFlagOwn, sFlagRow, sNinv, sK = 75, 76, 77, 78
sXcur = 79
sM1, sM2, sM3 = 80, 82, 84
sStg = 87
sF = 88
sPar0, sPar1, sHs, sP = 92, 93, 94, 95
sStamp = 86
vL16, vL16b, vPollX, vPollKV, vCsT, vCsV, vStW, vStR, vStatSt, vProf, vFlagOff = 1, 2, 3, 4, 5, 6, 7, 8, 9, 10, 11
vRd = 12
vBQ, vBO, vB1, vB1h, vB2 = 20, 21, 22, 23, 24
vPoll, vFlagVal, vM = 25, 26, 27
vD = 28
vKVa, vPollH, vPollP, vKVb = 32, 33, 34, 35
vSel = 36
vC1, vC2 = 40, 42
vSum = 44
vT = 48
vOnes = vT + 8
vW = 64
vA, vB, vX = 112, 144, 176
vK, vV, vQ = 208, 224, 240

def vr(b, n=4): return f"v[{b}:{b+n-1}]"
def ar(b, n=4): return f"a[{b}:{b+n-1}]"
def srd(b): return f"s[{b}:{b+3}]"

class Gen:
    def __init__(self, stamps=False, opts=None):
        self.e = E(); self.stamps = stamps; self.snames = []
        self.o = dict(D=16)
        if opts: self.o.update(opts)
        self.ring_free_upto = -1
    def stamp(self, name):
        if self.stamps:
            if name not in self.snames: self.snames.append(name)
            idx = self.snames.index(name); assert idx < 64
            e = self.e
            e("s_memtime s[98:99]\n s_memrealtime s[100:101]\n s_waitcnt lgkmcnt(0)")
            e.lg_done = e.lg_n
            e("v_mov_b32 v0, s98")
            e.vm(f"buffer_store_dword v0, v{vFlagOff}, {srd(SRD_WS)}, s{sStamp} offen offset:{8*idx}")
            e(f"s_lshl_b32 s99, s{sSpin}, 24\n s_and_b32 s100, s100, 0xffffff\n s_or_b32 s100, s100, s99\n v_mov_b32 v0, s100")
            e.vm(f"buffer_store_dword v0, v{vFlagOff}, {srd(SRD_WS)}, s{sStamp} offen offset:{8*idx+4}")
    def fstamp(self, fill, t, name):
        if self.stamps: fill[t].insert(0, lambda e_: self.stamp(name))
    def flag_items(self, val, after):
        return [("wait", after), [f"s_add_u32 s{sT0}, s{sFl}, {val}", f"v_mov_b32 v{vFlagVal}, s{sT0}"],
                ("vm", f"buffer_store_dword v{vFlagVal}, v{vFlagOff}, {srd(SRD_WS)}, s{sFlagOwn} offen sc1")]
    def poll_load(self, kind, tag):
        if kind == "x": return ("vm", f"buffer_load_dword v{vPoll}, v{vPollX}, {srd(SRD_WS)}, s{sFlagRow} offen sc1", tag)
        if kind in ("h", "p", "p1"): return ("vm", f"buffer_load_dword v{vPoll}, v{dict(h=vPollH, p=vPollP, p1=vM)[kind]}, {srd(SRD_WS)}, s{sFlagRow} offen sc1", tag)
        if kind == "dbg": return ("vm", f"buffer_load_dword v{vPoll}, v0, {srd(SRD_DBG)}, 0 offen sc1", tag)
        if kind == "col": return ("vm", f"buffer_load_dword v{vPoll}, v0, {srd(SRD_WS)}, 0 offen sc1", tag)
        return ("vm", f"buffer_load_dword v{vPoll}, v{vPollKV}, {srd(SRD_WS)}, 0 offen sc1", tag)
    def poll_check(self, kind, val, tag):
        def f(e):
            slow = e.newlabel("slow"); back = e.newlabel("back")
            e(f"s_add_u32 s{sT0}, s{sFl}, {val}")
            e.wait(vm=tag)
            e(f"v_cmp_gt_u32 vcc, s{sT0}, v{vPoll}\n s_cbranch_vccnz {slow}")
            e.label(back)
            t = e.tail
            t += [slow + ":", "s_sleep 4", self.poll_load(kind, None)[1], f"s_add_u32 s{sSpin}, s{sSpin}, 1",
                  f"s_cmp_ge_u32 s{sSpin}, 0x40000", "s_cbranch_scc1 Lend", "s_waitcnt vmcnt(0)",
                  f"v_cmp_gt_u32 vcc, s{sT0}, v{vPoll}", f"s_cbranch_vccnz {slow}", f"s_branch {back}"]
        f.cost = 16
        return f
    def poll_wait(self, kind, val, tag, sleep=4):
        e = self.e
        lp = e.newlabel("pw"); ok = e.newlabel("pok")
        e(f"s_add_u32 s{sT0}, s{sFl}, {val}")
        e.wait(vm=tag)
        e.label(lp)
        e(f"v_cmp_gt_u32 vcc, s{sT0}, v{vPoll}\n s_cbranch_vccz {ok}")
        if sleep: e(f"s_sleep {sleep}")
        e.raw(self.poll_load(kind, None)[1])
        e(f"s_add_u32 s{sSpin}, s{sSpin}, 1\n s_cmp_ge_u32 s{sSpin}, 0x40000\n s_cbranch_scc1 Lend\n s_waitcnt vmcnt(0)\n s_branch {lp}")
        e.label(ok)
    def stage_desc(self, s):
        if s < 24:
            c = s // 8; col = [2048, 4096, 0][c]
            return SRD_QKV, vBQ, 8*6144 - 1024, col, sRot8 + s % 8, 96, s % 8 == 0
        if s < 32:
            h = (s - 24) // 4
            return SRD_WO, vBO, 4*2048 - 1024, h*32*2048, sRot4 + s % 4, 64, s % 4 == 0
        if s < 56:
            c = (s - 32) // 8
            return SRD_W1, vB1, 8*7168 - 1024, 2048*c, sRot8 + s % 8, 112, s % 8 == 0
        if s < 60: return SRD_W1, vB1h, 8*7168 - 1024, 0, "lit", (s - 56)*256*7168, s == 56
        return SRD_W2, vB2, 8*2048 - 1024, 0, None, None, s == 60
    F2U = [(c, k+d) for k in (0, 2, 4) for c in (0, 1) for d in (0, 1)] + [(0, 6), (1, 6)] + [(2, k) for k in range(7)] + [(3, k) for k in range(7)]
    F2X = (2, 3, 1, 0)
    def dma_items(self, s, force_first=None, nochk=False):
        sr, base, step, const, tab, mul, first = self.stage_desc(s % 88)
        if force_first is not None: first = force_first
        if self.o.get("whit"): sr, base, step, const, mul, tab = SRD_WO, vB2, 8*2048 - 1024, 0, 32, sRot8 + s % 8
        it = []
        if first:
            for i in range(4):
                k = const + i*step
                it.append(f"v_add_u32 v{vD+i}, {k}, v{base}" if k else f"v_mov_b32 v{vD+i}, v{base}")
        def chk(e, s=s):
            assert nochk or s <= self.ring_free_upto, (s, self.ring_free_upto)
        if tab == "lit":
            it.append([chk, f"s_mov_b32 s{sOffW}, {mul}"])
        elif tab is not None:
            it.append([chk, f"s_mul_i32 s{sOffW}, s{tab}, {mul}"])
        else:
            ch, ks = self.F2U[s - 60]
            if ks < 6:
                it.append([chk, f"s_add_u32 s{sOffW}, s{sF+ch}, s{sPar1 if ks & 1 else sPar0}"])
                if ks >= 2: it.append(f"s_add_u32 s{sOffW}, s{sOffW}, {(ks//2)*1024*2048}")
            else:
                it.append([chk, f"s_lshl_b32 s{sOffW}, s{sHs}, 5"])
                it.append(f"s_sub_u32 s{sOffW}, s{sF+ch}, s{sOffW}")
                it.append(f"s_add_u32 s{sOffW}, s{sOffW}, {3072*2048}")
        it.append(f"s_add_u32 m0, s{sLdsW}, {(s % 8)*16384}")
        for i in range(4):
            off = f" offset:{i*1024}" if i else ""
            if self.o.get("nodma") and i < 3 and s % 88 >= 8: continue
            it.append(("vm", f"buffer_load_dwordx4 v{vD+i}, {srd(sr)}, s{sOffW} offen{off} lds", ("W", s)))
        return it
    def xload_items(self, tab, base, pos0, tagname):
        if self.o.get("xhit"): base = sXA; tab = sRot8 + (pos0//4) % 8
        it = [f"s_add_u32 s{sOffX}, s{tab}, s{base}"] if tab is not None else list(base)
        for n in range(8):
            p = pos0 + n // 2; reg = (p % 32)*8 + (n % 2)*4
            off = f" offset:{(n % 4)*1024}" if n % 4 else ""
            it.append(("vm", f"buffer_load_dwordx4 {ar(reg)}, v{vL16 if n < 4 else vL16b}, {srd(SRD_WS)}, s{sOffX} offen{off} sc1", (tagname, p)))
        return it
    def frag_reads(self, stage, frs, buf, tag):
        it = []
        slot = stage % 8
        for n, (s, q) in enumerate(frs):
            for jj in range(2):
                off = (slot % 4)*16384 + s*4096 + jj*2048
                d = vW + buf*16 + n*4 + jj*2
                it.append(("ds", f"ds_read_b64_tr_b16 {vr(d,2)}, v{vRd + (slot//4)*4 + q} offset:{off}", tag))
        return it
    @staticmethod
    def cost(it):
        if isinstance(it, str):
            return 16 if it.startswith("v_mfma") else 8 if it.startswith(("v_exp", "v_rcp", "v_rsq")) else 4
        if callable(it): return getattr(it, "cost", 0)
        if isinstance(it, list): return sum(Gen.cost(x) for x in it)
        if it[0] == "vm": return 32 if "store_dwordx4" in it[1] else 8
        return 4
    def pre_reads(self, name, stage0, steps):
        for t in range(2):
            for it in self.frag_reads(stage0, steps[t]["fr"], t % 3, (name, t)): self.e.item(it)
    def run(self, name, stage0, steps, fill):
        e = self.e; n = len(steps)
        for t, st in enumerate(steps):
            nt = t + 2; self.cur_step = t
            reads = []; waits_vm = []; bar = False
            if st.get("xtag") is not None: waits_vm.append(st["xtag"])
            if nt < n:
                reads = self.frag_reads(stage0 + nt//4, steps[nt]["fr"], nt % 3, (name, nt))
                if nt % 8 == 0:
                    waits_vm.append(("W", stage0 + nt//4 + 1)); bar = True
            P = self.o.get("prof_" + name)
            if P:
                t0 = self.o.get("prof0", 0)
                if t >= t0 and (t-t0) % P == 0 and (t-t0)//P < 64: e("s_memtime s[96:97]")
                if t > t0 and (t-t0-1) % P == 0 and (t-t0-1)//P < 64:
                    if P == 1: e("s_waitcnt lgkmcnt(0)"); e.lg_done = e.lg_n
                    self.prof_pending = (t-t0-1)//P
            e.wait(vm=waits_vm if waits_vm else None, lg=(name, t))
            if getattr(self, "prof_pending", None) is not None:
                e(f"v_writelane_b32 v{vProf}, s96, {self.prof_pending}"); self.prof_pending = None
            if bar:
                if not self.o.get("nobar"): e("s_barrier")
                self.ring_free_upto = max(self.ring_free_upto, stage0 + nt//4 + 5)
            fl = list(fill[t]); total = sum(map(self.cost, fl)) + 4; done = 0; fi = 0
            per = max(4, total/8)
            for m, (acc, fr, x, first) in enumerate(st["mm"]):
                w = vr(vW + (t % 3)*16 + fr*4); xx = ar(x); a = vr(acc)
                a_, b_ = (xx, w) if st.get("swap") else (w, xx)
                e(f"v_mfma_f32_16x16x32_bf16 {a}, {a_}, {b_}, {'0' if first else a}")
                if reads: e.item(reads[m])
                g = 0
                while fi < len(fl) and (m == 7 or g == 0 or done + self.cost(fl[fi]) <= per*(m+1) + 0.01):
                    c = self.cost(fl[fi]); e.item(fl[fi]); fi += 1; done += c; g += c
    @staticmethod
    def spread(fill, items, t0, t1):
        n = len(items); span = t1 - t0
        for i, it in enumerate(items): fill[t0 + i*span//n].append(it)
    def pour(self, fill, items, t0, t1, bonus=None):
        base = [sum(map(self.cost, fill[t])) - (bonus(t) if bonus else 0) for t in range(t0, t1)]
        need = sum(map(self.cost, items))
        lo, hi = min(base), max(base) + need
        for _ in range(40):
            mid = (lo + hi)/2
            if sum(max(0, mid - b) for b in base) >= need: hi = mid
            else: lo = mid
        cum = 0; used = 0; k = 0
        for i, t in enumerate(range(t0, t1)):
            cum += max(0, hi - base[i]); mine = []
            while k < len(items) and (used + self.cost(items[k])/2 <= cum or t == t1-1):
                used += self.cost(items[k]); mine.append(items[k]); k += 1
            old = fill[t]; out = []; a = b = 0
            while a < len(old) or b < len(mine):
                if b >= len(mine) or (a < len(old) and a*len(mine) <= b*len(old)): out.append(old[a]); a += 1
                else: out.append(mine[b]); b += 1
            fill[t] = out
    def chunk_steps(self, acc, swap=False, xtag=None, inplace=False, nst=8, std=()):
        out = []
        for st in range(nst):
            xr = lambda s, tt: ((4*st + s) % 32)*8 + 4*tt
            f0 = st == 0 and not inplace
            for u in range(4):
                if st in std:
                    out.append(dict(fr=[(u, q) for q in range(4)], swap=swap, xtag=(xtag, 4*st+u) if xtag else None,
                                    mm=[(acc + 8*q + 4*tt, q, xr(u, tt), f0 and u == 0) for q in range(4) for tt in range(2)]))
                else:
                    mm = [(acc + 8*u, s, xr(s, 0), f0 and s == 0) for s in range(4)] + [(acc + 8*u + 4, s, xr(s, 1), f0 and s == 3) for s in (3, 2, 1, 0)]
                    out.append(dict(fr=[(s, u) for s in range(4)], swap=swap, xtag=(xtag, 4*st+3) if xtag else None, mm=mm))
        return out
    def stage_steps(self, acc, ks, first, xtag=None):
        out = []
        for u in range(4):
            xr = lambda s, tt: (4*ks + s)*8 + 4*tt
            mm = [(acc + 8*u, s, xr(s, 0), first and s == 0) for s in range(4)] + [(acc + 8*u + 4, s, xr(s, 1), first and s == 3) for s in (3, 2, 1, 0)]
            out.append(dict(fr=[(s, u) for s in range(4)], xtag=xtag, mm=mm))
        return out
    def half_steps(self, acc):
        out = []
        for st in range(4):
            for q in (0, 2, 1, 3):
                xr = lambda s, tt: (8*st + 4*(q >> 1) + s)*8 + 4*tt
                f0 = st == 0 and q < 2; a = acc + 8*(q & 1)
                mm = [(a, s, xr(s, 0), f0 and s == 0) for s in range(4)] + [(a + 4, s, xr(s, 1), f0 and s == 3) for s in (3, 2, 1, 0)]
                out.append(dict(fr=[(s, q) for s in range(4)], xtag=None, mm=mm))
        return out
    def at_least(self, t):
        def f(e): assert self.cur_step >= t, (self.cur_step, t)
        return f
    def cond0(self, body, pad=7):
        def f(e):
            skip = e.newlabel("c0")
            e(f"s_cmp_lg_u32 s{sLayer}, 0\n s_cbranch_scc1 {skip}")
            e2 = E(); e2.uid = e.uid + 1000
            save = self.e; self.e = e2
            body(e2)
            self.e = save; e.uid = e2.uid
            e.ins += ["; opt-begin"] + e2.ins + ["; opt-end"]
            e.tail += e2.tail
            e.label(skip)
        f.cost = 8
        return f
    def stats_load_items(self, base):
        it = []
        for i in range(4):
            off = f" offset:{i*1024}" if i else ""
            it.append(("vm", f"buffer_load_dwordx4 {vr(vK+4*i)}, v{vL16}, {srd(SRD_WS)}, s{base} offen{off} sc1", "stats"))
        return it
    def stats_items(self, mode):
        it = [("wait", "stats")]
        for k in range(4): it.append(f"v_add_f32 v{vK+k}, v{vK+k}, v{vK+4+k}")
        for k in range(4): it.append(f"v_add_f32 v{vK+8+k}, v{vK+8+k}, v{vK+12+k}")
        for k in range(4): it.append(f"v_add_f32 v{vK+k}, v{vK+k}, v{vK+8+k}")
        for sw in ("v_permlane32_swap_b32", "v_permlane16_swap_b32"):
            for k in range(4): it.append(f"v_mov_b32 v{vK+4+k}, v{vK+k}")
            for k in range(4): it.append(f"{sw} v{vK+k}, v{vK+4+k}")
            for k in range(4): it.append(f"v_add_f32 v{vK+k}, v{vK+k}, v{vK+4+k}")
        for tt in range(2): it.append(f"v_mul_f32 v{vC2+tt}, {hex(f2u(-1.0/1024))}, v{vK+2*tt}")
        for tt in range(2): it.append(f"v_mul_f32 v{vK+2*tt+1}, {hex(f2u(1.0/1024))}, v{vK+2*tt+1}")
        for tt in range(2): it.append(f"v_fma_f32 v{vK+2*tt+1}, -v{vC2+tt}, v{vC2+tt}, v{vK+2*tt+1}")
        for tt in range(2): it.append(f"v_max_f32 v{vK+2*tt+1}, 0, v{vK+2*tt+1}")
        for tt in range(2): it.append(f"v_add_f32 v{vK+2*tt+1}, {hex(f2u(1e-5))}, v{vK+2*tt+1}")
        for tt in range(2): it.append(f"v_rsq_f32 v{vC1+tt}, v{vK+2*tt+1}")
        if mode == "ffn":
            it.append("s_nop 0")
            for tt in range(2): it.append(f"v_mul_f32 v{vC1+tt}, {hex(f2u(-LOG2E))}, v{vC1+tt}")
        else:
            it.append(self.cond0(lambda e2: e2(f"v_mov_b32 v{vC1}, 1.0\n v_mov_b32 v{vC1+1}, 1.0\n v_mov_b32 v{vC2}, 0\n v_mov_b32 v{vC2+1}, 0"), pad=0))
            for k in (2, 3, 0, 1): it.append(("ds", f"ds_write_b32 v{vStW}, v{vC1+k} offset:{64*k}", "stw"))
        return it
    def vstat_reads(self):
        return [("wait", None, "stw")] + [("ds", f"ds_read_b128 {vr(vQ+4*k)}, v{vStR} offset:{64*k}", "str") for k in range(4)]
    def cs_reads(self, tile, nq=4, extra=None):
        it = []
        for q in range(nq):
            it.append(("ds", f"ds_read_b128 {vr(vT+4*q)}, v{extra if extra else vCsT} offset:{tile*256 + q*64}", "cs"))
        return it
    def kq_epilogue(self, acc, dst, c1, stores=None):
        it = [("wait", None, "cs")]
        for hh in range(2):
            for tt in range(2):
                for q in (2*hh, 2*hh+1):
                    a = acc + 8*q + 4*tt
                    for r in range(4): it.append(f"v_fmac_f32 v{a+r}, v{vT+4*q+r}, v{vC2+tt}")
                    for r in range(4): it.append(f"v_mul_f32 v{a+r}, v{c1+tt}, v{a+r}")
                    for k in range(2): it.append(f"v_cvt_pk_bf16_f32 v{dst+8*hh+4*tt+2*(q&1)+k}, v{a+2*k}, v{a+2*k+1}")
            for k in range(4): it.append(f"v_permlane16_swap_b32 v{dst+8*hh+k}, v{dst+8*hh+4+k}")
            if stores: it += stores[2*hh:2*hh+2]
        return it
    def csv_reads(self):
        return [("ds", f"ds_read_b32 v{vT+q}, v{vCsV} offset:{256 + q*64}", "cs") for q in range(4)]
    def v_epilogue(self, acc, stores):
        it = [("wait", None, ["cs", "str"])]
        for hh in range(2):
            for tt in range(2):
                d = vV + 8*hh + 4*tt
                for q in (2*hh, 2*hh+1):
                    a = acc + 8*q + 4*tt
                    for r in range(4): it.append(f"v_fmac_f32 v{a+r}, v{vT+q}, v{vQ+8+4*tt+r}")
                    for r in range(4): it.append(f"v_mul_f32 v{a+r}, v{vQ+4*tt+r}, v{a+r}")
                    for k in range(2): it.append(f"v_cvt_pk_bf16_f32 v{d+2*(q&1)+k}, v{a+2*k}, v{a+2*k+1}")
            for sw in ("v_permlane16_swap_b32", "v_permlane32_swap_b32"):
                for tt in range(2):
                    d = vV + 8*hh + 4*tt
                    for k in range(2): it.append(f"{sw} v{d+k}, v{d+2+k}")
            it += stores[2*hh:2*hh+2]
        return it
    def kv_stores(self, src, vaddr, tag):
        it = []
        for n in range(4):
            off = f" offset:{n*1024}" if n else ""
            it.append(("vm", f"buffer_store_dwordx4 {vr(src+4*n)}, v{vaddr}, {srd(SRD_WS)}, s{sKVown} offen{off} sc1", tag))
        return it
    def silu_epilogue(self, acc, nq, hoff, tag):
        it = [("wait", None, "cs")]
        if nq == 2:
            for k in range(8): it.append(f"v_add_f32 v{vT+k}, v{vT+k}, v{vT+8+k}")
        P = vK; T = vV
        n = 0
        for kp in range(nq//2):
            for tt in range(2):
                for q in (2*kp, 2*kp+1):
                    a = acc + 8*q + 4*tt; t = T + 4*(n % 2); n += 1
                    if self.o.get("nosilu"): continue
                    for r in range(4): it.append(f"v_fmac_f32 v{a+r}, v{vT+4*q+r}, v{vC2+tt}")
                    for r in range(4): it.append(f"v_mul_f32 v{a+r}, v{vC1+tt}, v{a+r}")
                    for r in range(4): it.append(f"v_exp_f32 v{t+r}, v{a+r}")
                    for r in range(4): it.append(f"v_fma_f32 v{t+r}, v{t+r}, s{sK}, s{sK}")
                    for r in range(4): it.append(f"v_rcp_f32 v{t+r}, v{t+r}")
                    for r in range(4): it.append(f"v_mul_f32 v{a+r}, v{t+r}, v{a+r}")
                    for k in range(2): it.append(f"v_cvt_pk_bf16_f32 v{P+8*kp+4*tt+2*(q&1)+k}, v{a+2*k}, v{a+2*k+1}")
                off = kp*2048 + tt*1024
                st = ("vm", f"buffer_store_dwordx4 {vr(P+8*kp+4*tt)}, v{vL16}, {srd(SRD_WS)}, s{sT1} offen" + (f" offset:{off}" if off else "") + " sc1", tag)
                it.append(list(hoff) + [st])
        return it
    def partial_items(self, acc, ch, kp):
        pk = self.pack_items(kp, acc)
        ad = [f"s_xor_b32 s{sT1}, s{sJ}, {4*self.F2X[ch]}", f"s_mul_i32 s{sT1}, s{sT1}, 12288", f"s_add_u32 s{sT1}, s{sT1}, s{sP}"] + ([f"s_add_u32 s{sT1}, s{sT1}, {ch*4096}"] if ch else [])
        st = [("vm", f"buffer_store_dwordx4 {vr(vK+8*kp+4*tt)}, v{vL16}, {srd(SRD_WS)}, s{sT1} offen" + (f" offset:{kp*2048+tt*1024}" if kp or tt else "") + " sc1", ("ps", ch)) for tt in range(2)]
        return (ad if kp == 0 else []) + pk[:4] + [st[0]] + pk[4:] + [st[1]]
    def partial_reg(self, ch): return 224 + 16*(ch % 2)
    def partial_loads(self, ch):
        it = [f"s_mul_i32 s{sOffX}, s{sJ}, 12288", f"s_add_u32 s{sOffX}, s{sOffX}, s{sP}"] + ([f"s_add_u32 s{sOffX}, s{sOffX}, {ch*4096}"] if ch else [])
        for n in range(4):
            it.append(("vm", f"buffer_load_dwordx4 {ar(self.partial_reg(ch)+4*n)}, v{vL16}, {srd(SRD_WS)}, s{sOffX} offen" + (f" offset:{n*1024}" if n else "") + " sc1", ("pl", ch)))
        return it
    def ones_items(self): return [f"v_mov_b32 v{vOnes+k}, 0x3f803f80" for k in range(4)]
    def ident_items(self):
        it = [f"v_mov_b32 v{vT+k}, 0" for k in (0, 1, 4, 5)]
        it += [f"v_mov_b32 v{vT+6}, 0x3f80", f"v_mov_b32 v{vT+7}, 0x3f800000",
               f"v_cndmask_b32 v{vT+2}, v{vT+6}, v{vT+7}, s[{sM1}:{sM1+1}]", f"v_cndmask_b32 v{vT+3}, v{vT}, v{vT+6}, s[{sM2}:{sM2+1}]",
               f"v_cndmask_b32 v{vT+2}, v{vT+2}, v{vT}, s[{sM2}:{sM2+1}]", f"v_cndmask_b32 v{vT+3}, v{vT+3}, v{vT+7}, s[{sM3}:{sM3+1}]",
               f"v_cndmask_b32 v{vT+2}, v{vT+2}, v{vT}, s[{sM3}:{sM3+1}]",
               [f"v_cmp_gt_u32 vcc, 0x1000, v{vStatSt}", "s_nop 1", f"v_cndmask_b32 v{vT+2}, v{vT}, v{vT+2}, vcc", f"v_cndmask_b32 v{vT+3}, v{vT}, v{vT+3}, vcc"]]
        return it
    def partial_adds(self, x):
        it = [("wait", ("pl", x))]
        for q in range(4):
            for tt in range(2):
                a = vr(vX + 8*q + 4*tt)
                it.append(f"v_mfma_f32_16x16x32_bf16 {a}, {vr(vT + (0 if q & 1 else 2))}, {ar(self.partial_reg(x) + 8*(q >> 1) + 4*tt)}, {a}")
        return it
    def pack_items(self, kp, acc=vX):
        it = []
        for tt in range(2):
            for q in (2*kp, 2*kp+1):
                a = acc + 8*q + 4*tt
                for k in range(2): it.append(f"v_cvt_pk_bf16_f32 v{vK+8*kp+4*tt+2*(q&1)+k}, v{a+2*k}, v{a+2*k+1}")
        return it
    def xstore_items(self, kp):
        return [("vm", f"buffer_store_dwordx4 {vr(vK+8*kp+4*tt)}, v{vL16}, {srd(SRD_WS)}, s{sXcur} offen" + (f" offset:{kp*2048+tt*1024}" if kp or tt else "") + " sc1", "pub") for tt in range(2)]
    def pub_addr(self, xbase, xadd):
        return [f"s_lshl_b32 s{sXcur}, s{sJ}, 12", f"s_add_u32 s{sXcur}, s{sXcur}, s{xbase}"] + ([f"s_add_u32 s{sXcur}, s{sXcur}, {xadd}"] if xadd else [])
    def publish_stats(self, stbase, stadd):
        e = self.e; S = vV
        for kp in range(2):
            for tt in range(2):
                p = vr(vK + 8*kp + 4*tt)
                e(f"v_mfma_f32_16x16x32_bf16 {vr(S+8*tt)}, {vr(vOnes)}, {p}, {'0' if kp == 0 else vr(S+8*tt)}")
                e(f"v_mfma_f32_16x16x32_bf16 {vr(S+8*tt+4)}, {p}, {p}, {'0' if kp == 0 else vr(S+8*tt+4)}")
        e(f"s_lshl_b32 s{sT1}, s{sJ}, 8\n s_add_u32 s{sT1}, s{sT1}, s{stbase}")
        if stadd: e(f"s_add_u32 s{sT1}, s{sT1}, {stadd}")
        for tt in range(2):
            g = S + 8*tt + 4
            e(f"v_mov_b32 v{vQ+2*tt}, v{S+8*tt}")
            e(f"v_cndmask_b32 v{vQ+2*tt+1}, v{g}, v{g+1}, s[{sM1}:{sM1+1}]")
            e(f"v_cndmask_b32 v{vQ+2*tt+1}, v{vQ+2*tt+1}, v{g+2}, s[{sM2}:{sM2+1}]")
            e(f"v_cndmask_b32 v{vQ+2*tt+1}, v{vQ+2*tt+1}, v{g+3}, s[{sM3}:{sM3+1}]")
        e.vm(f"buffer_store_dwordx4 {vr(vQ)}, v{vStatSt}, {srd(SRD_WS)}, s{sT1} offen sc1", "pub")
    def emit(self, items):
        for it in items: self.e.item(it)
    def x_sched(self, fill, tag, tabs, first, last, t0):
        for st in range(first, last):
            self.spread(fill, self.xload_items(tabs[st][0], tabs[st][1], 4*st, tag), t0 + 4*(st-first), t0 + 4*(st-first) + 4)
    def w_schedule_head(self, fill, s0, last):
        self.spread(fill, self.dma_items(s0+8) + self.dma_items(s0+9), 16, 24)
        self.spread(fill, self.dma_items(s0+10) + self.dma_items(s0+11), 24, 30)
        for k in range(12, last - s0 + 1): self.spread(fill, self.dma_items(s0+k), 4*(k-4)-2, 4*(k-4)+2)
    def cs_selector(self, d):
        e = self.e
        e(f"v_bfe_u32 v0, v{vL16}, 4, 3")
        for k in range(4):
            e(f"v_cmp_eq_u32 vcc, {2*k}, v0\n v_mov_b32 v{d+4}, 0x3f80\n v_cndmask_b32 v{d+k}, 0, v{d+4}, vcc")
            e(f"v_cmp_eq_u32 vcc, {2*k+1}, v0\n v_mov_b32 v{d+4}, 0x3f800000\n v_cndmask_b32 v{d+k}, v{d+k}, v{d+4}, vcc")
    def rows_reduce(self, r):
        e = self.e
        for sw in ("v_permlane32_swap_b32", "v_permlane16_swap_b32"):
            for k in range(4): e(f"v_mov_b32 v{r+4+k}, v{r+k}")
            for k in range(4): e(f"{sw} v{r+k}, v{r+4+k}")
            for k in range(4): e(f"v_add_f32 v{r+k}, v{r+k}, v{r+4+k}")
    def cs_tiles(self):
        self.e(f"s_mov_b32 s{sT0}, s{sW}\n s_add_u32 s3, s{sW}, 4\n s_min_u32 s3, s3, 6")
    def cs_publish(self, acc):
        e = self.e; T = vB + 16
        e(f"v_bfe_u32 v{T}, v{vL16}, 7, 1\n v_lshlrev_b32 v{T}, 11, v{T}\n v_bfe_u32 v{T+1}, v{vL16}, 4, 3\n v_lshl_add_u32 v{T}, v{T+1}, 5, v{T}")
        e(f"v_bfe_u32 v{T+1}, v{vL16}, 8, 1\n v_lshl_add_u32 v{T}, v{T+1}, 4, v{T}\n v_add_u32 v{T}, s{sStg}, v{T}")
        for t in range(7): e.ds(f"ds_write_b128 v{T}, {vr(acc+4*t)} offset:{t*256}", "csw")
        self.cs_tiles()
        e(f"v_lshrrev_b32 v{T+1}, 8, v{vL16}\n v_mul_u32_u24 v{T+1}, {STGW}, v{T+1}\n v_and_b32 v{T+2}, 0xf0, v{vL16}\n v_add_u32 v{T+1}, v{T+1}, v{T+2}")
        for n, st in enumerate((sT0, 3)):
            e(f"s_lshl_b32 s{sT1}, s{st}, 8\n s_add_u32 s{sT1}, s{sT1}, {L_STG}\n v_add_u32 v{T+2+n}, s{sT1}, v{T+1}")
        e.wait(lg="all")
        e("s_barrier")
        for n in range(2):
            for p in range(2): e.ds(f"ds_read_b128 {vr(vB+8*n+4*p)}, v{T+2+n} offset:{p*2048}", "csr")
        e.wait(lg="all")
        for n, st in enumerate((sT0, 3)):
            for k in range(4): e(f"v_add_f32 v{vB+8*n+k}, v{vB+8*n+k}, v{vB+8*n+4+k}")
            self.rows_reduce(vB + 8*n)
            e(f"s_lshl_b32 s{sT1}, s{sJ}, 3\n s_add_u32 s{sT1}, s{sT1}, s{st}\n s_lshl_b32 s{sT1}, s{sT1}, 4\n s_add_u32 s{sT1}, s{sT1}, s{sG}\n s_lshl_b32 s{sT1}, s{sT1}, 8")
            e(f"s_add_u32 s{sT1}, s{sT1}, {WS_CSP}")
            e.vm(f"buffer_store_dwordx4 {vr(vB+8*n)}, v{vStatSt}, {srd(SRD_WS)}, s{sT1} offen sc1")
    def cs_gather(self):
        e = self.e
        self.cs_tiles()
        for n, st in enumerate((sT0, 3)):
            e(f"s_lshl_b32 s{sT1}, s{sJ}, 3\n s_add_u32 s{sT1}, s{sT1}, s{st}\n s_lshl_b32 s{sT1}, s{sT1}, 12\n s_add_u32 s{sT1}, s{sT1}, {WS_CSP}")
            for i in range(4): e.vm(f"buffer_load_dwordx4 {vr(vB+16*n+4*i)}, v{vL16}, {srd(SRD_WS)}, s{sT1} offen" + (f" offset:{i*1024}" if i else "") + " sc1", ("csg", n))
        for n, st in enumerate((sT0, 3)):
            r = vB + 16*n
            e.wait(vm=("csg", n))
            for k in range(8): e(f"v_add_f32 v{r+k}, v{r+k}, v{r+8+k}")
            for k in range(4): e(f"v_add_f32 v{r+k}, v{r+k}, v{r+4+k}")
            self.rows_reduce(r)
            e(f"s_lshl_b32 s{sT1}, s{st}, 8\n s_add_u32 s{sT1}, s{sT1}, {L_CS}\n v_and_b32 v{r+8}, 0xf0, v{vL16}\n v_add_u32 v{r+8}, s{sT1}, v{r+8}")
            e.ds(f"ds_write_b128 v{r+8}, {vr(r)}", "csw2")
        e.wait(lg="all")
    def qkv_share_loads(self):
        def body(e):
            e(f"s_lshl_b32 s{sT0}, s{sTB}, 4\n v_lshrrev_b32 v0, 7, v{vL16}\n v_add_u32 v0, s{sT0}, v0\n v_mul_u32_u24 v0, 6144, v0\n v_and_b32 v{vM}, 0x70, v{vL16}\n v_add_u32 v0, v0, v{vM}")
            e(f"s_lshl_b32 s{sT1}, s{sJ}, 7")
            for t, col in enumerate((2048, 4096, 0)):
                for i in range(2):
                    e(f"s_add_u32 s{sT0}, s{sT1}, {col + i*8*6144}")
                    e.vm(f"buffer_load_dwordx4 {ar(64+8*t+4*i)}, v0, {srd(SRD_QKV)}, s{sT0} offen")
        return self.cond0(body, pad=0)
    def dummy(self): return 0 if any(k.startswith("prof_") for k in self.o) else vProf
    def prefetch(self, r):
        return [f"s_add_u32 s{sT0}, s{sPf}, {r*896*1024}", ("vm", f"buffer_load_dword v{self.dummy()}, v{vL16}, {srd(SRD_X)}, s{sT0} offen")]
    def helper(self, kind, arg):
        if self.o.get("nohelp"): return []
        d = self.dummy()
        if kind == "f": return [("vm", f"buffer_load_dword v{d}, v{vB2}, {srd(SRD_W2)}, s{sHF+arg} offen")]
        if kind == "wo":
            return [f"s_lshl_b32 s{sT0}, s{sHrow}, 11", f"s_or_b32 s{sT1}, s{sJ}, 7", f"s_sub_u32 s{sT1}, s{sT1}, 4", f"s_lshl_b32 s{sT1}, s{sT1}, 7", f"s_add_u32 s{sT0}, s{sT0}, s{sT1}",
                    ("vm", f"buffer_load_dword v{d}, v{vB2}, {srd(SRD_WO)}, s{sT0} offen")]
        sr, base, rs = (SRD_QKV, vBQ, 6144) if kind == "qkv" else (SRD_W1, vB1, 7168)
        it = [f"s_mul_i32 s{sT0}, s{sHrow}, {rs}"]
        if kind == "half": it += [f"s_lshl_b32 s{sT1}, s{sJ}, 7", f"s_sub_u32 s{sT0}, s{sT0}, s{sT1}", f"s_add_u32 s{sT0}, s{sT0}, {6144 + 384}"]
        else: it += [f"s_add_u32 s{sT0}, s{sT0}, s{sHcol}"] + ([f"s_add_u32 s{sT0}, s{sT0}, {arg}"] if arg else [])
        return it + [("vm", f"buffer_load_dword v{d}, v{base}, {srd(sr)}, s{sT0} offen")]
    def w1_share_dma(self):
        def body(e):
            e(f"s_lshl_b32 s{sT0}, s{sTB}, 4")
            e(f"v_lshrrev_b32 v0, 7, v{vL16}\n v_add_u32 v0, s{sT0}, v0\n v_mul_u32_u24 v0, 7168, v0\n v_and_b32 v{vSum+3}, 0x70, v{vL16}\n v_add_u32 v0, v0, v{vSum+3}")
            e(f"v_lshrrev_b32 v{vSum+2}, 6, v{vL16}\n v_add_u32 v{vSum+2}, s{sT0}, v{vSum+2}\n v_mul_u32_u24 v{vSum+2}, 7168, v{vSum+2}\n v_and_b32 v{vSum+3}, 0x30, v{vL16}\n v_add_u32 v{vSum+2}, v{vSum+2}, v{vSum+3}")
            e(f"s_lshl_b32 s{sT1}, s{sJ}, 7")
            for n in range(7):
                e(f"s_add_u32 m0, s{sStg}, {n*1024}")
                if n < 6: e(f"s_add_u32 s{sT0}, s{sT1}, {(n//2)*2048 + (n % 2)*8*7168}")
                else: e(f"s_lshl_b32 s{sT0}, s{sJ}, 6\n s_add_u32 s{sT0}, s{sT0}, 6144")
                e.vm(f"buffer_load_dwordx4 v{0 if n < 6 else vSum+2}, {srd(SRD_W1)}, s{sT0} offen lds")
        return self.cond0(body)
    def cs_produce(self):
        def body(e):
            e(f"v_add_u32 v{vB+31}, s{sStg}, v{vL16}")
            for n in range(7): e.ds(f"ds_read_b128 {vr(vB+4*n)}, v{vB+31} offset:{n*1024}")
            self.cs_selector(vT)
            for n in range(6):
                d = vr(vA + 4*(n//2))
                e(f"v_mfma_f32_16x16x32_bf16 {d}, {vr(vT)}, {ar(64+4*n)}, {'0' if n % 2 == 0 else d}")
            e.wait(lg="all")
            for n in range(7):
                d = vr(vA + 12 + 4*(n//2))
                e(f"v_mfma_f32_16x16x32_bf16 {d}, {vr(vT)}, {vr(vB+4*n)}, {'0' if n % 2 == 0 else d}")
            self.cs_publish(vA)
        return self.cond0(body)
    def cs_consume(self, val):
        def body(e):
            e(f"v_lshrrev_b32 v0, 6, v{vL16}\n v_lshlrev_b32 v0, 4, v0")
            e.item(self.poll_load("dbg", "poll"))
            self.poll_wait("dbg", 16, "poll")
            e(f"v_lshrrev_b32 v0, 6, v{vL16}\n v_lshlrev_b32 v0, 13, v0\n s_lshl_b32 s{sT0}, s{sW}, 11\n s_lshl_b32 s{sT1}, s{sJ}, 7\n s_add_u32 s{sT0}, s{sT0}, s{sT1}\n v_add_u32 v0, s{sT0}, v0")
            e.item(self.poll_load("col", "poll"))
            self.poll_wait("col", val, "poll")
            self.cs_gather()
        return self.cond0(body)
    def kfrag(self, hh, b, s): return ar(128*hh + 8*b + 4*s) if b < 8 else vr(vK + 8*hh + 4*s)
    def vfrag(self, hh, b, s): return ar(128*hh + 64 + 8*b + 4*s) if b < 8 else vr(vV + 8*hh + 4*s)
    def kv_dma_items(self, isv):
        it = []
        for i in range(2):
            it.append(f"s_add_u32 m0, s{sLdsW2}, {isv*49152 + i*4096}")
            for n in range(4):
                it.append(("vm", f"buffer_load_dwordx4 v{vL16b if isv else vL16}, {srd(SRD_WS)}, s{sKVb+i} offen" + (f" offset:{n*1024}" if n else "") + " sc1 lds", ("kvd", isv)))
        return it
    def kv_own_writes(self, isv):
        return [("ds", f"ds_write_b128 v{vKVb if isv else vKVa}, {vr((vV if isv else vK) + 4*n)} offset:{32768 + n*1024}", ("kvw", isv)) for n in range(4)]
    def kv_reads(self, isv, hh, b):
        return [("ds", f"ds_read_b128 {ar(128*hh + 64*isv + 8*b + 4*s)}, v{vKVb if isv else vKVa} offset:{b*4096 + hh*2048 + s*1024}", ("kv", isv, hh, b)) for s in range(2)]
    def mask_items(self):
        MD, MO = vB, vB + 16; vFD = vM
        it = [f"v_bfe_u32 v{MD}, v{vL16}, 4, 5", f"v_lshrrev_b32 v{vFD}, 9, v{vL16}", f"v_lshlrev_b32 v{vFD}, 2, v{vFD}",
              f"v_sub_u32 v{vFD}, v{MD}, v{vFD}", f"v_cvt_f32_i32 v{vFD}, v{vFD}"]
        for r in range(16):
            c = float(8*(r >> 2) + (r & 3))
            it.append([f"s_mov_b32 s{sT1}, {hex(f2u(c))}", f"v_sub_f32_e64 v{MD+r}, s{sT1}, v{vFD} clamp"])
            it.append(f"v_sub_f32 v{MO+r}, 1.0, v{MD+r}")
            it.append(f"v_mul_f32 v{MD+r}, {hex(f2u(-1e30))}, v{MD+r}")
            it.append(f"v_mul_f32 v{MO+r}, {hex(f2u(-1e30))}, v{MO+r}")
        return it
    def set_exec(self, b):
        if b >= 8: return ["s_mov_b64 exec, -1"]
        return [f"s_cmp_le_u32 s{sNinv}, {b}", "s_cselect_b64 exec, -1, 0"]
    def attn_vm(self, items, b):
        if items:
            if b > 0: self.e("s_mov_b64 exec, -1")
            self.emit(items)
    def pass1(self, hh, m, segs):
        e = self.e
        MD, MO = vB, vB + 16; S = [vW + 16, vW + 32]
        def smfma(b):
            if b < 8: e.wait(lg=("kv", 0, hh, b))
            d = vr(S[b % 2], 16); c = vr(MO, 16) if b == 0 else vr(MD, 16) if b == 8 else "0"
            return [f"v_mfma_f32_32x32x16_bf16 {d}, {self.kfrag(hh,b,0)}, {vr(vQ+8*hh)}, {c}",
                    f"v_mfma_f32_32x32x16_bf16 {d}, {self.kfrag(hh,b,1)}, {vr(vQ+8*hh+4)}, {d}"]
        e(f"v_mov_b32 v{m}, 0xff800000")
        for x in smfma(0): e(x)
        for b in range(9):
            mm = smfma(b+1) if b < 8 else []
            if mm: e(mm[0])
            self.attn_vm(segs[b], b)
            for x in self.set_exec(b): e(x)
            if mm: e(mm[1])
            s = S[b % 2]
            for k in range(8): e(f"v_max3_f32 v{m}, v{m}, v{s+2*k}, v{s+2*k+1}")
        e(f"v_mov_b32 v0, v{m}")
        e(f"v_permlane32_swap_b32 v{m}, v0")
        e(f"v_max_f32 v{m}, v{m}, v0")
    def pass2(self, hh, m, segs, tag):
        e = self.e
        MD, MO = vB, vB + 16; TF = vW; S = [vW + 16, vW + 32]; S2 = vA; O = vA + 16; P = [vT, vT + 8]
        tile = lambda b: S2 if b == 8 else S[b % 2]
        for r in range(16): e(f"v_sub_f32 v{S[0]+r}, v{MO+r}, v{m}")
        def smfma(b):
            d = vr(tile(b), 16); c = d if b in (0, 8) else vr(TF, 16)
            return [f"v_mfma_f32_32x32x16_bf16 {d}, {self.kfrag(hh,b,0)}, {vr(vQ+8*hh)}, {c}",
                    f"v_mfma_f32_32x32x16_bf16 {d}, {self.kfrag(hh,b,1)}, {vr(vQ+8*hh+4)}, {d}"]
        def pv(b):
            p = P[b % 2]
            c0 = "0" if b == 0 else vr(O, 16); s0 = "0" if b == 0 else vr(vSum)
            return [f"v_mfma_f32_32x32x16_bf16 {vr(O,16)}, {self.vfrag(hh,b,0)}, {vr(p)}, {c0}",
                    f"v_mfma_f32_32x32x16_bf16 {vr(O,16)}, {self.vfrag(hh,b,1)}, {vr(p+4)}, {vr(O,16)}",
                    f"v_mfma_f32_16x16x32_bf16 {vr(vSum)}, {vr(vSel)}, {vr(p)}, {s0}",
                    f"v_mfma_f32_16x16x32_bf16 {vr(vSum)}, {vr(vSel)}, {vr(p+4)}, {vr(vSum)}"]
        mm = smfma(0)
        e(f"v_sub_f32 v{TF}, 0, v{m}"); e(f"v_sub_f32 v{TF+1}, 0, v{m}")
        e(mm[0])
        for r in range(2, 8): e(f"v_sub_f32 v{TF+r}, 0, v{m}")
        e(mm[1])
        for r in range(8, 16): e(f"v_sub_f32 v{TF+r}, 0, v{m}")
        for r in range(16): e(f"v_sub_f32 v{S2+r}, v{MD+r}, v{m}")
        for r in range(16): e(f"v_mov_b32 v{vT+r}, 0")
        for b in range(9):
            mm = (smfma(b+1) if b < 8 else [])
            if b >= 1:
                if b-1 < 8: e.wait(lg=("kv", 1, hh, b-1))
                mm = mm + pv(b-1)
            s = tile(b); p = P[b % 2]
            va = []
            for k in range(8):
                va += [f"v_exp_f32 v{s+2*k}, v{s+2*k}", f"v_exp_f32 v{s+2*k+1}, v{s+2*k+1}"]
                if k >= 1: va.append(f"v_cvt_pk_bf16_f32 v{p+k-1}, v{s+2*k-2}, v{s+2*k-1}")
            va.append(f"v_cvt_pk_bf16_f32 v{p+7}, v{s+14}, v{s+15}")
            if mm: e(mm.pop(0))
            self.attn_vm(segs[b], b)
            for x in self.set_exec(b): e(x)
            per = 4
            vi = 0
            while vi < len(va):
                for x in va[vi:vi+per]: e(x)
                vi += per
                if mm: e(mm.pop(0))
            for x in mm: e(x)
        for x in pv(8): e(x)
        e(f"s_lshl_b32 s{sT0}, s{sJ}, 11\n s_add_u32 s{sT0}, s{sT0}, s{sO}")
        if hh: e(f"s_add_u32 s{sT0}, s{sT0}, 32768")
        e(f"v_rcp_f32 v0, v{vSum}")
        for r in range(16): e(f"v_mul_f32 v{O+r}, v0, v{O+r}")
        for k in range(8): e(f"v_cvt_pk_bf16_f32 v{S2+k}, v{O+2*k}, v{O+2*k+1}")
        for k in range(4): e(f"v_permlane16_swap_b32 v{S2+k}, v{S2+4+k}")
        for tt in range(2):
            e.vm(f"buffer_store_dwordx4 {vr(S2+4*tt)}, v{vL16}, {srd(SRD_WS)}, s{sT0} offen" + (" offset:1024" if tt else "") + " sc1", tag)
    def setup(self):
        e = self.e
        e("s_cmp_ge_u32 s2, 256\n s_cbranch_scc1 Lend")
        e("s_load_dwordx16 s[48:63], s[0:1], 0\n s_load_dwordx2 s[64:65], s[0:1], 64")
        e(f"v_lshrrev_b32 v1, 6, v0\n v_and_b32 v0, 63, v0\n v_readfirstlane_b32 s{sW}, v1")
        e(f"s_and_b32 s{sT0}, s2, 7\n s_lshr_b32 s{sT1}, s2, 3")
        e(f"s_lshr_b32 s{sG}, s{sT0}, 1\n s_lshl_b32 s{sG}, s{sG}, 2\n s_lshr_b32 s3, s{sT1}, 3\n s_add_u32 s{sG}, s{sG}, s3")
        e(f"s_and_b32 s{sJ}, s{sT0}, 1\n s_lshl_b32 s{sJ}, s{sJ}, 3\n s_and_b32 s3, s{sT1}, 7\n s_add_u32 s{sJ}, s{sJ}, s3")
        e(f"s_lshl_b32 s{sTB}, s{sG}, 2\n s_add_u32 s{sTB}, s{sTB}, s{sW}")
        e(f"s_lshl_b32 s{sLdsW}, s{sW}, 12\n s_mov_b32 s{sLayer}, 0\n s_mov_b32 s{sFl}, 0\n s_mov_b32 s{sSpin}, 0")
        e("s_waitcnt lgkmcnt(0)")
        for (d, p, n) in [(SRD_X, 48, 2048*1024*2), (SRD_QKV, 50, 1024*3072*2), (SRD_WO, 52, 1024*1024*2), (SRD_W1, 56, 1024*3584*2),
                          (SRD_W2, 58, 3584*1024*2), (SRD_OUT, 60, 2048*1024*2), (SRD_DBG, 62, 256), (SRD_WS, 64, WS_BYTES)]:
            e(f"s_mov_b32 s{d}, s{p}\n s_and_b32 s{d+1}, s{p+1}, 0xffff\n s_mov_b32 s{d+2}, {n}\n s_mov_b32 s{d+3}, 0x00020000")
        e(f"v_and_b32 v44, 15, v0\n v_lshrrev_b32 v45, 4, v0\n v_lshrrev_b32 v46, 3, v0")
        e(f"v_lshlrev_b32 v{vL16}, 4, v0\n v_add_u32 v{vL16b}, 4096, v{vL16}")
        e(f"v_cmp_eq_u32 vcc, 0, v0\n v_mov_b32 v48, {OOB}\n v_cndmask_b32 v{vFlagOff}, v48, v0, vcc")
        if self.stamps:
            e(f"s_lshl_b32 s{sStamp}, s2, 2\n s_add_u32 s{sStamp}, s{sStamp}, s{sW}\n s_lshl_b32 s{sStamp}, s{sStamp}, 10\n s_add_u32 s{sStamp}, s{sStamp}, {WS_STAMP}")
            e("v_mov_b32 v63, v0")
            self.stamp("entry")
            e("v_mov_b32 v0, v63")
        e(f"s_lshl_b32 s{sT0}, s{sG}, 4\n s_add_u32 s{sT0}, s{sT0}, s{sJ}\n s_lshl_b32 s{sT0}, s{sT0}, 14\n s_add_u32 s{sT0}, s{sT0}, s{sLdsW}")
        e(f"s_mul_i32 s{sT1}, s{sW}, 4160\n s_add_u32 m0, s{sT1}, {L_STG}")
        for r in range(2):
            for h in range(2):
                e.vm(f"buffer_load_dwordx4 v{vL16}, {srd(SRD_X)}, s{sT0} offen" + (" offset:1024" if h else "") + " lds", "x0")
            if r == 0: e(f"s_add_u32 m0, s{sT1}, {L_STG + 2080}\n s_add_u32 s{sT0}, s{sT0}, 2048")
        e(f"s_mul_i32 s{sStg}, s{sW}, {STGW}\n s_add_u32 s{sStg}, s{sStg}, {L_STG}")
        if not self.o.get("nocodepf"):
            e(f"s_getpc_b64 s[96:97]")
            e.label("Lpc")
            e(f"s_sub_u32 s96, s96, Lpc-{KNAME}\n s_subb_u32 s97, s97, 0\n s_and_b32 s97, s97, 0xffff\n s_mov_b32 s98, Lcodeend-{KNAME}\n s_mov_b32 s99, 0x00020000")
            e(f"s_lshr_b32 s{sT0}, s2, 3\n s_lshl_b32 s{sT0}, s{sT0}, 12\n s_lshl_b32 s{sT1}, s{sW}, 10\n s_add_u32 s{sT0}, s{sT0}, s{sT1}")
            e.vm(f"buffer_load_dwordx4 {vr(vQ)}, v{vL16}, s[96:99], s{sT0} offen")
        e(f"s_lshl_b32 s{sFlagRow}, s{sTB}, 11\n s_lshl_b32 s{sT1}, s{sJ}, 7\n s_add_u32 s{sFlagOwn}, s{sFlagRow}, s{sT1}\n v_mov_b32 v{vFlagVal}, 0")
        e.vm(f"buffer_store_dword v{vFlagVal}, v{vFlagOff}, {srd(SRD_WS)}, s{sFlagOwn} offen sc1", "pub")
        e(f"s_lshl_b32 s{sT0}, s{sG}, {self.o.get('gs', 0)}\n s_and_b32 s{sT0}, s{sT0}, {self.o.get('gm', 1)}\n s_and_b32 s3, s{sJ}, {self.o.get('jm', 0)}\n s_xor_b32 s3, s3, s{sT0}")
        for st in range(8): e(f"s_xor_b32 s{sRot8+st}, s3, {st}\n s_lshl_b32 s{sRot8+st}, s{sRot8+st}, 13")
        e(f"s_and_b32 s{sT0}, s{sG}, {self.o.get('g4', 3)}")
        for st in range(4): e(f"s_xor_b32 s{sRot4+st}, s{sT0}, {st}\n s_lshl_b32 s{sRot4+st}, s{sRot4+st}, 13")
        e(f"s_lshl_b32 s{sT0}, s{sTB}, 16")
        for (d, r) in [(sXA, R_XA), (sXB, R_XB), (sO, R_O)]: e(f"s_add_u32 s{d}, s{sT0}, {R0 + r}")
        e(f"s_mul_i32 s{sH}, s{sTB}, 229376\n s_add_u32 s{sH}, s{sH}, {R0 + R_H}")
        e(f"s_lshl_b32 s{sT0}, s{sTB}, 12\n s_add_u32 s{sStA}, s{sT0}, {R0 + R_STA}\n s_add_u32 s{sStB}, s{sT0}, {R0 + R_STB}")
        e(f"s_lshl_b32 s{sT1}, s{sJ}, 19\n s_add_u32 s{sT1}, s{sT1}, {R0 + R_KV}")
        e(f"s_lshl_b32 s{sT0}, s{sTB}, 13\n s_add_u32 s{sKVown}, s{sT0}, s{sT1}")
        for b in range(2):
            e(f"s_add_u32 s{sT0}, s{sTB}, s{sW}\n s_sub_i32 s{sT0}, s{sT0}, {8-b}\n s_max_i32 s{sT0}, s{sT0}, 0\n s_lshl_b32 s{sT0}, s{sT0}, 13\n s_add_u32 s{sKVb+b}, s{sT0}, s{sT1}")
        e(f"s_lshl_b32 s{sLdsW2}, s{sW}, 13\n s_lshl_b32 s{sPf}, s2, 2\n s_add_u32 s{sPf}, s{sPf}, s{sW}\n s_lshl_b32 s{sPf}, s{sPf}, 10")
        e(f"s_lshr_b32 s{sT0}, s{sJ}, 2\n s_lshl_b32 s{sHs}, s{sT0}, 13\n s_lshl_b32 s{sT0}, s{sT0}, 19")
        for ch, x in enumerate(self.F2X):
            e(f"s_xor_b32 s{sT1}, s{sJ}, {4*x}\n s_lshl_b32 s{sT1}, s{sT1}, 7\n s_add_u32 s{sF+ch}, s{sT0}, s{sT1}")
        e(f"s_and_b32 s{sPar0}, s{sG}, {self.o.get('par', 1)}\n s_lshl_b32 s{sPar0}, s{sPar0}, 18\n s_xor_b32 s{sPar1}, s{sPar0}, {1 << 18}")
        e(f"s_mul_i32 s{sP}, s{sTB}, {16*12288}\n s_add_u32 s{sP}, s{sP}, {R0 + R_P}")
        e(f"s_and_b32 s{sT0}, s{sG}, 3\n s_lshl_b32 s{sT0}, s{sT0}, 1\n s_bfe_u32 s{sT1}, s{sJ}, 0x10002\n s_add_u32 s{sOffX}, s{sT0}, s{sT1}")
        e(f"s_and_b32 s{sOffW}, s{sJ}, 3\n s_lshl_b32 s{sOffW}, s{sOffW}, 3\n s_lshl_b32 s{sHrow}, s{sOffX}, 7\n s_add_u32 s{sHrow}, s{sHrow}, s{sOffW}")
        e(f"s_and_b32 s{sT0}, s{sJ}, 7\n s_sub_i32 s{sHcol}, 3, s{sT0}\n s_lshl_b32 s{sHcol}, s{sHcol}, 7")
        e(f"s_lshr_b32 s{sT0}, s{sOffX}, 1\n s_lshl_b32 s{sT0}, s{sT0}, 10\n s_and_b32 s{sT1}, s{sOffX}, 1\n s_lshl_b32 s{sT1}, s{sT1}, 7")
        e(f"s_cmp_lt_u32 s{sOffX}, 6\n s_cselect_b32 s{sT1}, s{sT1}, 0\n s_cselect_b32 s{sOffX}, 8, 7\n s_add_u32 s{sT0}, s{sT0}, s{sT1}\n s_add_u32 s{sOffW}, s{sOffW}, s{sT0}")
        for ch, x in enumerate(self.F2X):
            e(f"s_and_b32 s{sT0}, s{sJ}, 8\n s_or_b32 s{sT0}, s{sT0}, {(3 ^ (4*x)) & 7}\n s_lshr_b32 s{sT1}, s{sT0}, 2\n s_lshl_b32 s{sT1}, s{sT1}, s{sOffX}")
            e(f"s_add_u32 s{sT1}, s{sT1}, s{sOffW}\n s_lshl_b32 s{sT1}, s{sT1}, 11\n s_xor_b32 s{sT0}, s{sT0}, {4*x}\n s_lshl_b32 s{sT0}, s{sT0}, 7\n s_add_u32 s{sHF+ch}, s{sT0}, s{sT1}")
        e(f"s_sub_i32 s{sNinv}, 8, s{sTB}\n s_max_i32 s{sNinv}, s{sNinv}, 0")
        e(f"s_mov_b32 s{sK}, {hex(f2u(-LOG2E))}")
        for (d, m) in [(sM1, 0x22222222), (sM2, 0x44444444), (sM3, 0x88888888)]: e(f"s_mov_b32 s{d}, {hex(m)}\n s_mov_b32 s{d+1}, {hex(m)}")
        e(f"v_lshrrev_b32 v{vPollX}, 2, v0\n v_lshlrev_b32 v{vPollX}, 7, v{vPollX}")
        e(f"s_and_b32 s{sT0}, s{sJ}, 12\n v_add_u32 v48, s{sT0}, v45\n v_lshlrev_b32 v{vPollH}, 7, v48")
        e(f"s_and_b32 s{sT0}, s{sJ}, 3\n v_lshl_add_u32 v48, v45, 2, s{sT0}\n v_lshlrev_b32 v{vPollP}, 7, v48")
        e(f"v_add_u32 v{vKVa}, s{sLdsW}, v{vL16}\n v_add_u32 v{vKVb}, 49152, v{vKVa}")
        e(f"s_add_u32 s{sT0}, s{sTB}, s{sW}\n s_sub_i32 s{sT0}, s{sT0}, 8\n v_lshrrev_b32 v48, 5, v0\n v_add_u32 v48, s{sT0}, v48\n v_max_i32 v48, 0, v48\n v_lshlrev_b32 v48, 11, v48\n s_lshl_b32 s{sT1}, s{sJ}, 7\n v_add_u32 v{vPollKV}, s{sT1}, v48")
        e(f"v_lshlrev_b32 v48, 4, v45\n v_add_u32 v{vCsT}, {L_CS}, v48\n v_lshlrev_b32 v54, 2, v44\n v_add_u32 v{vCsV}, {L_CS}, v54")
        e(f"s_lshl_b32 s{sT0}, s{sW}, 9\n s_add_u32 s{sT0}, s{sT0}, {L_SCR}\n v_add_u32 v{vStW}, s{sT0}, v54\n v_add_u32 v{vStR}, s{sT0}, v48")
        e(f"v_lshrrev_b32 v48, 2, v44\n v_cmp_eq_u32 vcc, v48, v45\n v_lshlrev_b32 v54, 4, v44\n v_mov_b32 v55, {OOB}\n v_cndmask_b32 v{vStatSt}, v55, v54, vcc")
        e(f"v_mov_b32 v{vProf}, 0")
        e(f"v_lshrrev_b32 v48, 2, v44\n v_lshl_add_u32 v48, v45, 2, v48")
        e(f"v_bfe_u32 v54, v48, 1, 2\n v_and_b32 v55, 3, v0\n v_lshlrev_b32 v55, 3, v55\n v_lshl_add_u32 v55, v48, 7, v55")
        for q in range(4):
            e(f"v_xor_b32 v56, {q}, v54\n v_lshl_add_u32 v{vRd+q}, v56, 5, v55\n v_add_u32 v{vRd+4+q}, 0x10000, v{vRd+q}")
        e(f"v_lshlrev_b32 v48, 1, v45\n v_and_b32 v54, 7, v0\n v_xor_b32 v54, v54, v48\n v_lshlrev_b32 v47, 4, v54")
        e(f"s_lshl_b32 s{sT1}, s{sJ}, 7\n v_add_u32 v55, s{sT1}, v47")
        e(f"s_lshl_b32 s{sT0}, s{sW}, 5\n v_add_u32 v56, s{sT0}, v46")
        e(f"v_mul_u32_u24 v57, 6144, v56\n v_add_u32 v{vBQ}, v57, v55\n v_mul_u32_u24 v57, 7168, v56\n v_add_u32 v{vB1}, v57, v55")
        e(f"v_lshl_add_u32 v{vB2}, v56, 11, v47")
        e(f"v_lshrrev_b32 v57, 5, v0\n v_lshlrev_b32 v57, 4, v57\n v_and_b32 v58, 3, v46\n s_lshl_b32 s{sT0}, s{sW}, 6\n v_add3_u32 v57, v57, v58, s{sT0}\n v_lshl_add_u32 v{vBO}, v57, 11, v55")
        e(f"s_and_b32 s{sT0}, s{sG}, {self.o.get('g1', 1)}\n v_lshrrev_b32 v57, 2, v54\n v_xor_b32 v57, s{sT0}, v57\n v_lshl_add_u32 v57, v57, 7, v56\n v_mul_u32_u24 v57, 7168, v57")
        e(f"v_and_b32 v58, 3, v54\n v_lshlrev_b32 v58, 4, v58\n s_lshl_b32 s{sT1}, s{sJ}, 6\n s_add_u32 s{sT1}, s{sT1}, 6144\n v_add3_u32 v{vB1h}, v57, v58, s{sT1}")
        e(f"v_bfe_u32 v48, v0, 2, 1\n v_and_b32 v54, 1, v45\n v_cmp_eq_u32 vcc, v48, v54\n v_mov_b32 v55, 0x3f803f80")
        for k in range(4): e(f"v_cndmask_b32 v{vSel+k}, 0, v55, vcc")
    def phase0(self):
        e = self.e
        self.ring_free_upto = 7
        e(f"s_lshl_b32 s{sT0}, s{sW}, 5\n s_add_u32 s{sT0}, s{sT0}, s{sHrow}\n s_mul_i32 s{sT0}, s{sT0}, 6144\n s_and_b32 s{sT1}, s{sJ}, 8\n s_lshl_b32 s{sT1}, s{sT1}, 7\n s_add_u32 s{sT0}, s{sT0}, s{sT1}")
        for r in range(8):
            e.vm(f"buffer_load_dwordx4 {ar(4*r)}, v{vL16}, {srd(SRD_QKV)}, s{sT0} offen offset:2048")
            if r < 7: e(f"s_add_u32 s{sT0}, s{sT0}, 6144")
        e(f"v_mov_b32 v48, 0\n v_mov_b32 v49, 0\n v_mov_b32 v50, 0\n v_mov_b32 v51, 0\n v_add_u32 v52, {L_CS}, v{vL16}")
        e.ds("ds_write_b128 v52, v[48:51]")
        e(f"v_and_b32 v48, 7, v0\n v_and_b32 v49, 3, v46\n v_lshrrev_b32 v50, 5, v0")
        e(f"v_mul_u32_u24 v51, 2080, v48\n v_lshl_add_u32 v51, v49, 3, v51\n v_lshl_add_u32 v51, v50, 6, v51\n s_lshl_b32 s{sT0}, s{sW}, 9\n s_add_u32 s{sT0}, s{sT0}, {L_STG}\n v_add_u32 v51, s{sT0}, v51")
        e(f"v_lshlrev_b32 v52, 4, v48\n v_lshl_add_u32 v52, v49, 8, v52\n v_lshl_add_u32 v52, v50, 11, v52")
        e(f"v_lshlrev_b32 v53, 3, v48\n v_add_u32 v53, {L_SCR}, v53\n s_lshl_b32 s{sT0}, s{sW}, 6\n v_add_u32 v54, s{sT0}, v53")
        e(f"s_lshl_b32 s{sXcur}, s{sG}, 2\n s_lshr_b32 s{sT0}, s{sJ}, 2\n s_add_u32 s{sXcur}, s{sXcur}, s{sT0}\n s_lshl_b32 s{sXcur}, s{sXcur}, 16")
        e(f"s_bfe_u32 s{sT0}, s{sJ}, 0x10001\n s_lshl_b32 s{sT0}, s{sT0}, 10\n s_add_u32 s{sXcur}, s{sXcur}, s{sT0}\n s_and_b32 s{sT0}, s{sJ}, 1\n s_lshl_b32 s{sT0}, s{sT0}, 7")
        e(f"s_add_u32 s{sXcur}, s{sXcur}, s{sT0}\n s_lshl_b32 s{sT0}, s{sW}, 14\n s_add_u32 s{sXcur}, s{sXcur}, s{sT0}\n s_add_u32 s{sXcur}, s{sXcur}, {R0 + R_XA}")
        e(f"v_lshlrev_b32 v55, 4, v48\n v_lshl_add_u32 v55, v46, 11, v55")
        e(f"v_lshlrev_b32 v56, 7, v44\n v_lshl_add_u32 v56, v45, 3, v56\n v_add_u32 v56, s{sStg}, v56")
        e.wait(vm="x0")
        e("s_barrier")
        self.stamp("x0")
        for i in range(4):
            for jj in range(2): e.ds(f"ds_read_b64 {vr(vK+4*i+2*jj,2)}, v51 offset:{i*128 + jj*32}", ("x0r", i))
        S, Q = vB, vB + 1
        for i in range(4):
            e.wait(lg=("x0r", i))
            for k in range(4):
                s = vK + 4*i + k; d = vA + 8*i + 2*k
                e(f"v_lshlrev_b32 v{d}, 16, v{s}\n v_and_b32 v{d+1}, 0xffff0000, v{s}")
                if i == 0 and k == 0: e(f"v_add_f32 v{S}, v{d}, v{d+1}\n v_mul_f32 v{Q}, v{d}, v{d}\n v_fmac_f32 v{Q}, v{d+1}, v{d+1}")
                else: e(f"v_add_f32 v{S}, v{S}, v{d}\n v_fmac_f32 v{Q}, v{d}, v{d}\n v_add_f32 v{S}, v{S}, v{d+1}\n v_fmac_f32 v{Q}, v{d+1}, v{d+1}")
        for k in range(2): e(f"v_add_f32_dpp v{S+k}, v{S+k}, v{S+k} row_ror:8 row_mask:0xf bank_mask:0xf")
        for sw in ("v_permlane32_swap_b32", "v_permlane16_swap_b32"):
            for k in range(2): e(f"v_mov_b32 v{S+2+k}, v{S+k}")
            for k in range(2): e(f"{sw} v{S+k}, v{S+2+k}")
            for k in range(2): e(f"v_add_f32 v{S+k}, v{S+k}, v{S+2+k}")
        e.ds(f"ds_write_b64 v54, {vr(S,2)}")
        e.wait(lg="all")
        e("s_barrier")
        for w in range(4): e.ds(f"ds_read_b64 {vr(S+2*w,2)}, v53 offset:{64*w}")
        e.wait(lg="all")
        for k in range(2): e(f"v_add_f32 v{S+k}, v{S+k}, v{S+2+k}\n v_add_f32 v{S+4+k}, v{S+4+k}, v{S+6+k}")
        for k in range(2): e(f"v_add_f32 v{S+k}, v{S+k}, v{S+4+k}")
        e(f"v_mul_f32 v{S}, {hex(f2u(-1.0/1024))}, v{S}\n v_mul_f32 v{Q}, {hex(f2u(1.0/1024))}, v{Q}\n v_fma_f32 v{Q}, -v{S}, v{S}, v{Q}")
        e(f"v_max_f32 v{Q}, 0, v{Q}\n v_add_f32 v{Q}, {hex(f2u(1e-5))}, v{Q}\n v_rsq_f32 v{Q}, v{Q}\n v_mul_f32 v{S}, v{S}, v{Q}")
        for i in range(4):
            for k in range(8): e(f"v_fma_f32 v{vA+8*i+k}, v{vA+8*i+k}, v{Q}, v{S}")
            for k in range(4): e(f"v_cvt_pk_bf16_f32 v{vK+4*i+k}, v{vA+8*i+2*k}, v{vA+8*i+2*k+1}")
            e.vm(f"buffer_store_dwordx4 {vr(vK+4*i)}, v52, {srd(SRD_WS)}, s{sXcur} offen sc1", "pub")
            if i < 3: e(f"s_add_u32 s{sXcur}, s{sXcur}, 4096")
        self.stamp("xst")
        e(f"s_mul_i32 s{sT0}, s{sPf}, 6\n s_lshl_b32 s{sT1}, s{sPf}, 1")
        npf = self.o.get("npf", 0)
        for n, (sr, va, so, off) in enumerate([(SRD_QKV, vL16b, sT0, 0), (SRD_QKV, vL16b, sT0, 1024), (SRD_QKV, vL16, sT0, 0), (SRD_QKV, vL16, sT0, 1024), (SRD_WO, vL16, sT1, 0), (SRD_WO, vL16, sT1, 1024)][:npf]):
            e.vm(f"buffer_load_dwordx4 {ar(32+4*n)}, v{va}, {srd(sr)}, s{so} offen" + (f" offset:{off}" if off else ""))
        e.wait(vm="pub")
        e("s_barrier")
        self.stamp("acked")
        skip = e.newlabel("skip")
        e(f"s_lshl_b32 s{sT0}, s{sG}, 4\n v_mov_b32 v48, 1\n s_cmp_lg_u32 s{sW}, 0\n s_cbranch_scc1 {skip}")
        e.raw(f"buffer_atomic_add v48, v{vFlagOff}, {srd(SRD_DBG)}, s{sT0} offen sc1")
        e.label(skip)
        e(f"s_lshl_b32 s{sT0}, s{sTB}, 16\n s_lshl_b32 s{sT1}, s{sJ}, 7\n s_add_u32 s{sT0}, s{sT0}, s{sT1}\n s_mov_b32 m0, s{sStg}")
        for i in range(4):
            e.vm(f"buffer_load_dwordx4 v55, {srd(SRD_X)}, s{sT0} offen" + (f" offset:{i*1024}" if i else "") + " lds", "xr")
            if i < 3: e(f"s_add_u32 s{sT0}, s{sT0}, {8*2048 - 1024}")
        self.emit(self.helper("qkv", 4096))
        for s in range(0, 8): self.emit(self.dma_items(s))
        for k in range(2): e(f"s_mov_b32 s{SRD_X+k}, s{SRD_W2+k}")
        e(f"s_and_b32 s{sT0}, s{sJ}, 7\n s_cmp_eq_u32 s{sT0}, 3\n s_cselect_b32 s{SRD_X+2}, 0, s{SRD_W2+2}")
        e(f"s_mul_i32 s{sPf}, s{sG}, 14\n s_add_u32 s{sPf}, s{sPf}, s{sJ}\n s_cmp_gt_u32 s{sJ}, 3\n s_subb_u32 s{sPf}, s{sPf}, 0\n s_cmp_gt_u32 s{sJ}, 11\n s_subb_u32 s{sPf}, s{sPf}, 0")
        e(f"s_lshl_b32 s{sPf}, s{sPf}, 2\n s_add_u32 s{sPf}, s{sPf}, s{sW}\n s_lshl_b32 s{sPf}, s{sPf}, 10")
        e.wait(vm="xr")
        for kp in range(2):
            for tt in range(2):
                for jj in range(2):
                    e.ds(f"ds_read_b64 {vr(vK+8*kp+4*tt+2*jj,2)}, v56 offset:{tt*2048 + kp*64 + jj*32}")
        e(f"v_lshrrev_b32 v48, 8, v{vL16}\n v_min_u32 v48, 2, v48\n v_sub_u32 v48, s{sG}, v48\n v_max_i32 v48, 0, v48\n v_lshlrev_b32 v48, 4, v48")
        e.wait(lg="all")
        for kp in range(2):
            for tt in range(2):
                for jj in range(2):
                    for k in range(2):
                        s = vK + 8*kp + 4*tt + 2*jj + k; d = vX + 8*(2*kp+jj) + 4*tt + 2*k
                        e(f"v_lshlrev_b32 v{d}, 16, v{s}\n v_and_b32 v{d+1}, 0xffff0000, v{s}")
        e.wait(vm=("W", 1))
        e("s_barrier")
        self.pre_reads("qkv", 0, self.qkv_steps)
        self.stamp("ring")
        lp = e.newlabel("p0poll"); ok = e.newlabel("p0ok")
        e(f"s_cmp_lg_u32 s{sW}, 0\n s_cbranch_scc1 {ok}")
        e.label(lp)
        e.raw(f"buffer_load_dword v{vPoll}, v48, {srd(SRD_DBG)}, 0 offen sc1")
        e(f"s_add_u32 s{sSpin}, s{sSpin}, 1\n s_cmp_ge_u32 s{sSpin}, 0x40000\n s_cbranch_scc1 Lend\n s_waitcnt vmcnt(0)")
        e(f"v_cmp_gt_u32 vcc, 16, v{vPoll}\n s_cbranch_vccz {ok}\n s_sleep 8\n s_branch {lp}")
        e.label(ok)
        e("s_barrier")
    def layer(self):
        e = self.e; sp = self.spread; o = self.o
        cat = lambda xs: sum(xs, [])
        e.label("Llayer")
        self.stamp("Lstart")
        steps = self.qkv_steps
        fill = [[] for _ in steps]
        tabs = [(sRot8+st, sXA) for st in range(8)]
        for st in range(2): self.emit(self.xload_items(tabs[st][0], tabs[st][1], 4*st, "xa"))
        self.x_sched(fill, "xa", tabs, 2, 8, 0)
        fill[31].append(self.helper("qkv", 0)); fill[63].append(self.helper("wo", 0))
        self.w_schedule_head(fill, 0, 23)
        sp(fill, self.stats_load_items(sStA), 22, 26)
        sp(fill, self.flag_items(1, "kst"), 61, 62)
        sp(fill, [self.poll_load("kv", "poll")], 72, 73)
        sp(fill, [self.poll_check("kv", 1, "poll")], 77, 78)
        sp(fill, self.kv_dma_items(0), 78, 86)
        sp(fill, self.kv_own_writes(0), 87, 91)
        sp(fill, self.flag_items(2, "vst"), 85, 86)
        sp(fill, [self.poll_load("kv", "poll")], 94, 95)
        sp(fill, self.cs_reads(0), 28, 30)
        sp(fill, self.vstat_reads() + self.csv_reads(), 57, 61)
        sp(fill, self.cs_reads(2), 91, 93)
        self.pour(fill, self.stats_items("qkv") + [self.at_least(32)] + self.kq_epilogue(vA, vK, vC1, self.kv_stores(vK, vL16, "kst")), 30, 55)
        self.pour(fill, self.v_epilogue(vB, self.kv_stores(vV, vL16b, "vst")), 63, 79)
        qe = self.kq_epilogue(vA, vQ, vSum)
        self.pour(fill, self.mask_items() + [f"v_mul_f32 v{vSum+tt}, {hex(f2u(LOG2E/math.sqrt(32.0)))}, v{vC1+tt}" for tt in range(2)], 79, 95)
        fill[95] += qe[:21]
        for (t, n) in [(1, "k_first"), (32, "k_end"), (64, "v_end")]: self.fstamp(fill, t, n)
        self.run("qkv", 0, steps, fill)
        self.stamp("qkv_end")
        e.wait(vm=("kvd", 0), lg="all")
        e("s_barrier")
        side = self.kv_own_writes(1) + cat(self.kv_reads(0, 0, b) for b in range(8))
        rest = qe[21:]
        for k, it in enumerate(rest):
            e.item(it)
            if k % 3 == 0 and side: e.item(side.pop(0))
        self.emit(side)
        self.poll_wait("kv", 2, "poll")
        self.stamp("attn_start")
        seg = lambda: [[] for _ in range(9)]
        s1, s2, s3, s4 = seg(), seg(), seg(), seg()
        sp(s1, self.kv_dma_items(1), 0, 8); sp(s1, cat(self.kv_reads(0, 1, b) for b in range(8)), 1, 9)
        sp(s2, self.dma_items(30, True, True) + self.dma_items(31, False, True), 0, 8)
        s2[8].append(self.w1_share_dma())
        sp(s3, cat(self.kv_reads(1, 0, b) for b in range(2, 8)) + cat(self.kv_reads(1, 1, b) for b in range(8)), 0, 8)
        s4[3] += self.flag_items(3, "o0")
        sp(s4, cat(self.dma_items(s, None, True) for s in range(24, 30)), 0, 7)
        s4[7] += [self.qkv_share_loads(), self.helper("w1", 0)]; s4[8] += [self.poll_load("x", "poll")]
        self.pass1(0, vM, s1)
        self.pass1(1, vC2, s2)
        self.stamp("p1_end")
        e.wait(vm=("kvd", 1), lg="all")
        e("s_barrier")
        self.emit(self.kv_reads(1, 0, 0) + self.kv_reads(1, 0, 1))
        self.pass2(0, vM, s3, "o0")
        self.stamp("p2a_end")
        e.wait(lg="all")
        e("s_barrier")
        self.pass2(1, vC2, s4, "o1")
        self.stamp("attn_end")
        self.ring_free_upto = 31
        steps = self.chunk_steps(vX, xtag="xo", inplace=True, std=(0, 4))
        fill = [[] for _ in steps]
        e(f"s_add_u32 s{sXcur}, s{sO}, 32768")
        tabs = [(sRot4 + st % 4, sO if st < 4 else sXcur) for st in range(8)]
        self.poll_wait("x", 3, "poll")
        for st in range(2): self.emit(self.xload_items(tabs[st][0], tabs[st][1], 4*st, "xo"))
        e("s_barrier")
        self.pre_reads("wo", 24, steps)
        e(f"s_and_b32 s3, s{sG}, {o.get('g1', 1)}")
        for st in range(8): e(f"s_xor_b32 s{sRot8+st}, s3, {st}\n s_lshl_b32 s{sRot8+st}, s{sRot8+st}, 13")
        self.emit(self.flag_items(4, "o1"))
        e.item(self.cs_produce())
        self.stamp("wo_start")
        self.x_sched(fill, "xo", tabs, 2, 4, 0)
        sp(fill, [self.poll_load("x", "poll")], 8, 9)
        sp(fill, [self.poll_check("x", 4, "poll")], 12, 13)
        sp(fill, cat(self.xload_items(tabs[st][0], tabs[st][1], 4*st, "xo") for st in (4, 5)), 12, 16)
        self.x_sched(fill, "xo", tabs, 6, 8, 16)
        sp(fill, self.flag_items(5, ("xo", 16)), 18, 19)
        sp(fill, cat(self.dma_items(s) for s in range(32, 36)), 24, 31)
        fill[9] += self.ones_items()
        fill[23].append(self.helper("w1", 2048))
        fill[29] += self.pub_addr(sXB, 0)
        fill[31] += self.pack_items(0) + self.xstore_items(0)
        self.fstamp(fill, 16, "wo_half")
        self.run("wo", 24, steps, fill)
        self.stamp("wo_end")
        self.emit(self.pack_items(1) + self.xstore_items(1))
        self.publish_stats(sStB, 0)
        steps = self.chunk_steps(vA, xtag="xb", std=(0,)) + self.chunk_steps(vB) + self.chunk_steps(vA) + self.half_steps(vQ)
        for (ch, ks) in self.F2U:
            steps += self.stage_steps([vB, vA, vB, vX][ch], ks, ks == 0 and ch < 3, ("h", 4*ks+3) if ch == 0 else None)
        e.wait(vm=("W", 33), lg="all")
        e("s_barrier"); self.ring_free_upto = 39
        self.emit(self.dma_items(36))
        self.pre_reads("ffn", 32, steps)
        self.emit(self.flag_items(6, "pub"))
        self.stamp("t2_flag")
        for s in range(37, 40): self.emit(self.dma_items(s))
        e.item(self.cs_consume(5))
        e.item(self.poll_load("x", "poll"))
        self.poll_wait("x", 6, "poll")
        self.stamp("ffn_start")
        fill = [[] for _ in steps]
        tabs = [(sRot8+st, sXB) for st in range(8)]
        for st in range(2): self.emit(self.xload_items(tabs[st][0], tabs[st][1], 4*st, "xb"))
        self.x_sched(fill, "xb", tabs, 2, 8, 0)
        for r, t in enumerate(o.get("pft", [30, 30, 38, 46, 54, 54, 72, 72])): fill[t].append(self.prefetch(r))
        for (t, kind, arg) in [(31, "w1", 4096), (63, "half", 0), (84, "f", 0), (87, "f", 1), (135, "f", 2), (159, "f", 3), (187, "qkv", 2048), (205, "qkv", 4096)]:
            fill[t].append(self.helper(kind, arg))
        self.w_schedule_head(fill, 32, 91)
        fill[0].append([f"s_cmp_eq_u32 s{sLayer}, 0", f"s_cselect_b32 s{SRD_QKV+2}, {1024*3072*2}, 0"])
        sp(fill, self.stats_load_items(sStB), 22, 26)
        def hload(ks):
            if ks < 6: ad = [f"s_lshr_b32 s{sOffX}, s{sPar1 if ks & 1 else sPar0}, 5", f"s_add_u32 s{sOffX}, s{sOffX}, s{sXcur}"] + ([f"s_add_u32 s{sOffX}, s{sOffX}, {(ks//2)*65536}"] if ks >= 2 else [])
            else: ad = [f"s_add_u32 s{sOffX}, s{sH}, s{sHs}", f"s_add_u32 s{sOffX}, s{sOffX}, {3*65536}"]
            return self.xload_items(None, ad, 4*ks, "h")
        fill[93].append([f"s_lshl_b32 s{sXcur}, s{sHs}, 1", f"s_add_u32 s{sXcur}, s{sXcur}, s{sH}"])
        def hoff(c):
            if c < 3: return [f"s_lshl_b32 s{sT1}, s{sJ}, 12", f"s_add_u32 s{sT1}, s{sT1}, s{sH}"] + ([f"s_add_u32 s{sT1}, s{sT1}, {c*65536}"] if c else [])
            return [f"s_lshl_b32 s{sT1}, s{sJ}, 11", f"s_add_u32 s{sT1}, s{sT1}, s{sH}", f"s_add_u32 s{sT1}, s{sT1}, {3*65536}"]
        def handoff(kind, val, tag, tf, tc):
            sp(fill, self.flag_items(val, tag), tf, tf+1)
            sp(fill, [self.poll_load(kind, "poll")], tc-5, tc-4)
            sp(fill, [self.poll_check(kind, val, "poll")], tc, tc+1)
        handoff("h", 7, ("hs", 0), 70, 99);  sp(fill, hload(0) + hload(1), 100, 110)
        handoff("h", 8, ("hs", 1), 99, 114); sp(fill, hload(2) + hload(3), 114, 126)
        handoff("h", 9, ("hs", 2), 119, 133); sp(fill, hload(4) + hload(5), 133, 142)
        handoff("h", 10, ("hs", 3), 133, 149); sp(fill, hload(6), 149, 155)
        handoff("p", 11, ("ps", 1), 181, 198); sp(fill, self.partial_loads(0) + self.partial_loads(1), 198, 203)
        handoff("p1", 12, ("ps", 2), 203, 216); sp(fill, self.partial_loads(2), 216, 218)
        for (tile, t) in [(3, 28), (4, 63), (5, 94), (6, 112)]: sp(fill, self.cs_reads(tile), t, t+1)
        sp(fill, self.partial_items(vB, 0, 0), 162, 164); sp(fill, self.partial_items(vB, 0, 1), 164, 167)
        sp(fill, self.partial_items(vA, 1, 0) + self.partial_items(vA, 1, 1), 168, 175)
        sp(fill, self.partial_items(vB, 2, 0), 194, 196); sp(fill, self.partial_items(vB, 2, 1), 196, 198)
        sp(fill, self.ident_items() + self.ones_items() + [[f"s_xor_b32 s{sT0}, s{sJ}, 4", f"s_lshl_b32 s{sT0}, s{sT0}, 7", f"v_mov_b32 v{vM}, s{sT0}"]], 183, 192)
        sp(fill, self.partial_adds(0) + self.partial_adds(1), 207, 216)
        self.pour(fill, self.stats_items("ffn") + [self.at_least(32)] + self.silu_epilogue(vA, 4, hoff(0), ("hs", 0)), 30, 63)
        self.pour(fill, self.silu_epilogue(vB, 4, hoff(1), ("hs", 1)), 65, 93)
        self.pour(fill, self.silu_epilogue(vA, 4, hoff(2), ("hs", 2)), 96, 112)
        self.pour(fill, self.silu_epilogue(vQ, 2, hoff(3), ("hs", 3)), 114, 127)
        fill[219] += self.pub_addr(sXA, LAYER)
        pa = self.partial_adds(2)
        fill[223] += pa[:7]
        for (t, n) in [(1, "c0_first"), (32, "c0_end"), (64, "c1_end"), (96, "c2_end"), (112, "half_end"), (140, "f2_28"), (168, "f2_56"), (196, "f2_84")]:
            self.fstamp(fill, t, n)
        self.run("ffn", 32, steps, fill)
        self.emit(pa[7:] + self.pack_items(0))
        self.stamp("ffn2_end")
        if any(k.startswith("prof_") for k in o):
            e(f"s_lshl_b32 s{sT0}, s2, 2\n s_add_u32 s{sT0}, s{sT0}, s{sW}\n s_lshl_b32 s{sT0}, s{sT0}, 1\n s_add_u32 s{sT0}, s{sT0}, s{sLayer}\n s_lshl_b32 s{sT0}, s{sT0}, 8")
            e(f"s_add_u32 s{sT0}, s{sT0}, {WS_STAMP + 0x400000}\n v_lshrrev_b32 v0, 2, v{vL16}")
            e.vm(f"buffer_store_dword v{vProf}, v0, {srd(SRD_WS)}, s{sT0} offen")
        e(f"s_cmp_lg_u32 s{sLayer}, 0\n s_cbranch_scc1 Lfinal")
        self.emit(self.xstore_items(0) + self.pack_items(1) + self.xstore_items(1))
        self.publish_stats(sStA, LAYER)
        e.wait(vm=("W", 89))
        e("s_barrier"); self.ring_free_upto = 95
        self.emit(self.dma_items(92))
        self.pre_reads("qkv2", 0, self.qkv_steps)
        self.emit(self.flag_items(13, "pub"))
        self.stamp("t3_flag")
        for s in range(93, 96): self.emit(self.dma_items(s))
        e.item(self.poll_load("x", "poll"))
        for s in [sXA, sXB, sO, sH, sKVown, sStA, sStB, sP, sKVb, sKVb+1]: e(f"s_add_u32 s{s}, s{s}, {LAYER}")
        self.poll_wait("x", 13, "poll")
        self.stamp("trans_end")
        if self.stamps: e(f"s_add_u32 s{sStamp}, s{sStamp}, 512"); e.wait(vm="all")
        e(f"s_mov_b32 s{sLayer}, 1\n s_mov_b32 s{sFl}, 16\n s_mov_b32 s{SRD_X+2}, 0\n s_branch Llayer")
        e.label("Lfinal")
        e("s_nop 7")
        self.emit(self.pack_items(1))
        e(f"v_lshrrev_b32 v48, 4, v{vL16}\n v_and_b32 v49, 15, v48\n v_lshlrev_b32 v49, 11, v49\n v_bfe_u32 v50, v48, 4, 1\n v_lshl_add_u32 v49, v50, 5, v49")
        e(f"v_lshrrev_b32 v50, 5, v48\n v_lshl_add_u32 v49, v50, 4, v49")
        e(f"s_lshl_b32 s{sT0}, s{sTB}, 16\n s_lshl_b32 s{sT1}, s{sJ}, 7\n s_add_u32 s{sT0}, s{sT0}, s{sT1}\n s_add_u32 s{sT1}, s{sT0}, 32768")
        for kp in range(2):
            for tt in range(2):
                p = vK + 8*kp + 4*tt
                for k in range(2): e(f"v_permlane16_swap_b32 v{p+k}, v{p+2+k}")
                e.vm(f"buffer_store_dwordx4 {vr(p)}, v49, {srd(SRD_OUT)}, s{sT1 if tt else sT0} offen" + (" offset:64" if kp else ""))
        self.stamp("trans_end")
        e.label("Lend")
        e("s_endpgm")
    def build(self):
        self.qkv_steps = self.chunk_steps(vA, xtag="xa", std=(0,)) + self.chunk_steps(vB, swap=True) + self.chunk_steps(vA)
        self.setup()
        self.phase0()
        self.layer()
        body = self.e.finish()
        hdr = open("cdna_kernels/" + KNAME[:-7] + ".s.ref").read().split("; Override launch")[0] if False else ""
        out = [f"; stamps: {' '.join(self.snames)}"] if self.stamps else []
        if any(k.startswith("prof_") for k in self.o): out = ["; prof " + str(self.o)]
        out += [f"; @launch grid=(256,1,1) block=(256,1,1) lds={LDS_BYTES}",
               "; Generated by a hand-written generator script: persistent fused kernel, one workgroup per CU.",
               '.amdgcn_target "amdgcn-amd-amdhsa--gfx950"', ".text", f".globl {KNAME}", ".p2align 8", f".type {KNAME},@function", f"{KNAME}:"]
        out += body + ["Lcodeend:"]
        out += ['.section .rodata,"a"', ".p2align 6", f".amdhsa_kernel {KNAME}", "  .amdhsa_next_free_vgpr 512", "  .amdhsa_next_free_sgpr 102",
                "  .amdhsa_accum_offset 256", "  .amdhsa_group_segment_fixed_size 0", "  .amdhsa_kernarg_size 72", "  .amdhsa_user_sgpr_count 2",
                "  .amdhsa_user_sgpr_kernarg_segment_ptr 1", "  .amdhsa_system_sgpr_workgroup_id_x 1", ".end_amdhsa_kernel"]
        return "\n".join(out) + "\n"

if __name__ == "__main__":
    path = sys.argv[1]
    stamps = "stamps" in sys.argv[2:]
    opts = {}
    for a in sys.argv[2:]:
        if "=" in a:
            k, v = a.split("="); opts[k] = eval(v)
    g = Gen(stamps, opts)
    txt = g.build()
    open(path, "w").write(txt)
    print("lines", txt.count("\n"), "bytes", len(txt), "nops", g.e.nnops, "vm_max", g.e.vm_max)
```

```python
import re

def regs_of(op):
    op = op.strip()
    neg = op.lstrip("-")
    if neg.startswith("abs(") or neg.startswith("|"):
        neg = neg.replace("abs(", "").replace(")", "").replace("|", "")
    m = re.fullmatch(r"([vas])(\d+)", neg)
    if m: return {(m.group(1), int(m.group(2)))}
    m = re.fullmatch(r"([vas])\[(\d+):(\d+)\]", neg)
    if m: return {(m.group(1), i) for i in range(int(m.group(2)), int(m.group(3)) + 1)}
    if neg == "vcc": return {("s", 106), ("s", 107)}
    if neg == "exec": return {("s", 126), ("s", 127)}
    if neg == "m0": return {("s", 124)}
    return set()

TRANS = ("v_exp_f32", "v_log_f32", "v_rcp_f32", "v_rsq_f32", "v_sqrt_f32", "v_sin_f32", "v_cos_f32")

class I:
    __slots__ = ("text", "op", "ops", "kind", "w", "r", "srcA", "srcB", "srcC", "passes", "data", "states", "lds", "wide", "blk")
    def __init__(self, text):
        self.text = text
        t = text.split(";")[0].strip()
        self.kind = "other"; self.w = set(); self.r = set(); self.passes = 0; self.data = set(); self.states = 1
        self.srcA = self.srcB = self.srcC = set(); self.lds = False; self.wide = False
        if t.endswith(":") or t.startswith(".") or not t:
            self.kind = "label"; self.op = ""; self.states = 0; return
        parts = t.split(None, 1)
        self.op = op = parts[0]
        rest = parts[1] if len(parts) > 1 else ""
        ops = [x.strip() for x in rest.split(",")] if rest else []
        if ops:
            last = ops[-1].split()
            mods = last[1:]
            ops[-1] = last[0]
        else:
            mods = []
        self.ops = ops
        R = [regs_of(o) for o in ops]
        if op == "s_nop":
            self.kind = "nop"; self.states = int(ops[0], 0) + 1
        elif op.startswith("v_mfma"):
            self.kind = "mfma"; self.w = R[0]; self.srcA, self.srcB, self.srcC = R[1], R[2], R[3]
            self.r = R[1] | R[2] | R[3]
            self.passes = 8 if "32x32x16" in op else 4
        elif op.startswith("v_"):
            self.kind = "valu"
            base = op.replace("_e32", "").replace("_e64", "")
            if base.startswith("v_permlane"):
                self.w = R[0] | R[1]; self.r = R[0] | R[1]; self.kind = "perm"
            elif base in ("v_readfirstlane_b32", "v_readlane_b32"):
                self.w = R[0]; self.r = set().union(*R[1:]); self.kind = "rdlane"
            elif base.startswith("v_add_co") or base.startswith("v_addc_co") or base.startswith("v_sub_co"):
                self.w = R[0] | R[1]; self.r = set().union(*R[2:])
            else:
                self.w = R[0]; self.r = set().union(*R[1:]) if len(R) > 1 else set()
                if base.startswith("v_fmac") or base.startswith("v_dot2c"): self.r = self.r | R[0]
                if base in TRANS: self.kind = "trans"
                if any(m.startswith("row_") or m.startswith("quad_perm") for m in mods): self.kind = "dpp"; self.r = self.r | R[0]
        elif op.startswith("buffer_"):
            self.kind = "vmem"
            self.lds = "lds" in mods
            if op.startswith("buffer_load"):
                if self.lds: self.r = set().union(*R) | {("s", 124)}
                else: self.w = R[0]; self.r = set().union(*R[1:])
            elif op.startswith("buffer_store") or op.startswith("buffer_atomic"):
                self.r = set().union(*R); self.data = R[0]; self.wide = op.endswith("x4") or op.endswith("x3")
        elif op.startswith("ds_"):
            self.kind = "ds"
            if op.startswith("ds_read") or op.startswith("ds_bpermute"):
                self.w = R[0]; self.r = set().union(*R[1:])
            else:
                self.r = set().union(*R)
        elif op.startswith("s_"):
            self.kind = "salu"
            if op.startswith(("s_cmp", "s_cbranch", "s_branch", "s_waitcnt", "s_barrier", "s_sleep", "s_endpgm", "s_setprio", "s_bitcmp")):
                self.r = set().union(*R) if R else set()
            else:
                self.w = R[0] if R else set(); self.r = set().union(*R[1:]) if len(R) > 1 else set()

VALUK = ("valu", "trans", "perm", "rdlane", "dpp")
def vg(s): return {x for x in s if x[0] in "va"}
def sg(s): return {x for x in s if x[0] == "s"}

def need(p, c):
    n = 0
    if p.kind in VALUK:
        pv = vg(p.w); ps = sg(p.w)
        if c.kind == "mfma" and pv & c.r: n = max(n, 2)
        if c.kind in ("perm", "dpp") and pv & c.r: n = max(n, 2)
        if c.kind == "rdlane" and pv & c.r: n = max(n, 1)
        if p.kind == "trans" and c.kind in VALUK and pv & c.r: n = max(n, 1)
        if ps:
            if c.kind in VALUK and ps & c.r: n = max(n, 2 if c.kind != "rdlane" else 4)
            if c.kind == "vmem" and ps & c.r: n = max(n, 5)
            if c.kind == "salu" and ps & c.r and not c.op.startswith("s_cbranch"): n = max(n, 1)
    if p.kind == "mfma":
        big = 12 if p.passes == 8 else 8
        if c.kind == "mfma":
            if p.w & (c.srcA | c.srcB): n = max(n, big)
            if p.w & c.srcC and not (p.w == c.srcC and p.passes == c.passes): n = max(n, big - 2)
            if p.w & c.w and not (p.w == c.srcC and p.passes == c.passes): n = max(n, big - 2)
        elif c.kind in VALUK or c.kind in ("vmem", "ds"):
            if p.w & (c.r | c.w): n = max(n, big)
            if c.kind in VALUK and p.srcC & c.w: n = max(n, 7 if p.passes == 8 else 3)
    if p.kind == "salu" and ("s", 124) in p.w and c.kind == "vmem" and c.lds: n = max(n, 1)
    if p.kind == "vmem" and p.wide and p.data & c.w and (c.kind in VALUK or c.kind in ("mfma", "ds", "vmem")): n = max(n, 2)
    return n

class E:
    def __init__(self):
        self.ins = []
        self.vm_n = 0; self.vm_done = 0; self.vm_tag = {}
        self.lg_n = 0; self.lg_done = 0; self.lg_tag = {}
        self.uid = 0
        self.tail = []
    def raw(self, s): self.ins.append(s)
    def __call__(self, s):
        for l in s.split("\n"):
            l = l.strip()
            if l:
                assert not l.startswith(("buffer_", "ds_")), "use vm()/ds(): " + l
                self.ins.append(l)
    def label(self, n): self.ins.append(n + ":")
    def newlabel(self, b):
        self.uid += 1; return f"L{b}{self.uid}"
    def vm(self, s, tag=None):
        self.ins.append(s); self.vm_n += 1
        self.vm_max = max(getattr(self, "vm_max", 0), self.vm_n - self.vm_done)
        if tag is not None: self.vm_tag[tag] = self.vm_n
    def ds(self, s, tag=None):
        self.ins.append(s); self.lg_n += 1
        if tag is not None: self.lg_tag[tag] = self.lg_n
    def wait(self, vm=None, lg=None):
        parts = []
        if vm is not None:
            tags = vm if isinstance(vm, list) else [vm]
            pos = self.vm_n if "all" in tags else max(self.vm_tag[t] for t in tags)
            if pos > self.vm_done or "all" in tags:
                n = self.vm_n - pos
                parts.append(f"vmcnt({min(n, 63)})")
                self.vm_done = max(self.vm_done, pos)
        if lg is not None:
            tags = lg if isinstance(lg, list) else [lg]
            pos = self.lg_n if "all" in tags else max(self.lg_tag[t] for t in tags)
            if pos > self.lg_done or "all" in tags:
                n = self.lg_n - pos
                parts.append(f"lgkmcnt({min(n, 15)})")
                if n > 15: pos = self.lg_n - 15
                self.lg_done = max(self.lg_done, pos)
        if parts: self.ins.append("s_waitcnt " + " ".join(parts))
    def item(self, it):
        if isinstance(it, str): self(it)
        elif callable(it): it(self)
        elif isinstance(it, list):
            for x in it: self.item(x)
        elif it[0] == "vm": self.vm(it[1], it[2] if len(it) > 2 else None)
        elif it[0] == "ds": self.ds(it[1], it[2] if len(it) > 2 else None)
        elif it[0] == "wait": self.wait(it[1], it[2] if len(it) > 2 else None)
        else: raise ValueError(it)
    def finish(self, verbose=False):
        out = []; parsed = []; nn = 0; blk = 0; nb = 0; stack = []; anc = {0: set()}
        for s in self.ins + self.tail:
            if s == "; opt-begin": nb += 1; stack.append(blk); blk = nb; anc[nb] = set(stack); continue
            if s == "; opt-end": blk = stack.pop(); continue
            c = I(s); c.blk = blk
            if c.kind != "label":
                req = 0
                for skip in (False, True):
                    dist = 0
                    for p in reversed(parsed):
                        if dist >= 12: break
                        if skip and p.blk and p.blk != blk and p.blk not in anc[blk]: continue
                        k = need(p, c)
                        if k - dist > req: req = k - dist
                        dist += p.states
                if req > 0:
                    nop = I(f"s_nop {req-1}"); nop.blk = blk; parsed.append(nop); out.append(nop.text); nn += 1
                    if verbose: print("nop", req, "before", s)
            parsed.append(c); out.append(s)
        self.nnops = nn
        return out
```

```python
import sys, math, struct
from emit import E

KNAME = "interleave_layers__sliding_block__dense_activation_silu__prompt_kernel"
def f2u(x): return struct.unpack("<I", struct.pack("<f", x))[0]
LOG2E = 1.4426950408889634

WS_FLAGS = 0
WS_CSP = 0x20000
WS_STAMP = 0xF000000
R0 = 0x100000; LAYER = 0x4000000
R_STA = 0x0; R_STB = 0x40000; R_XA = 0x100000; R_XB = 0x500000; R_O = 0x900000; R_KV = 0xD00000; R_H = 0x1500000; R_P = 0x2300000
WS_BYTES = 268435456
OOB = 0x40000000
L_CS = 131072; L_SCR = 133120; L_STG = 135168; STGW = 7168; LDS_BYTES = 163840
SRD_WS, SRD_QKV, SRD_WO, SRD_W1, SRD_W2, SRD_X, SRD_OUT, SRD_DBG = 4, 8, 12, 16, 20, 24, 28, 32
sW, sG, sJ, sTB, sLayer, sLdsW, sOffW, sOffX, sFl, sT0, sT1, sSpin = 36, 37, 38, 39, 40, 41, 42, 43, 44, 45, 46, 47
sRot8 = 48
sRot4 = 56
sKVb = 60
sLdsW2, sPf = 62, 63
sHF = 64
sHrow, sHcol = 0, 1
sXA, sXB, sO, sH, sKVown, sStA, sStB = 68, 69, 70, 71, 72, 73, 74
sLkvS, sLrow, sNinv, sK = 75, 76, 77, 78
sLkvP = sFl
sLh, sLp, sLp1, sLcol = 32, 33, 34, 35
sXcur = 79
sVal = 96
sM1, sM2, sM3 = 80, 82, 84
sStg = 87
sF = 88
sPar0, sPar1, sHs, sP = 92, 93, 94, 95
sStamp = 86
vL16, vL16b, vPollX, vPollKV, vCsT, vCsV, vStW, vStR, vStatSt, vProf, vFlagOff = 1, 2, 3, 4, 5, 6, 7, 8, 9, 10, 11
vRd = 12
vBQ, vBO, vB1, vB1h, vB2 = 20, 21, 22, 23, 24
vPoll, vFlagVal, vM = 25, 26, 27
vD = 28
vKVa, vPollH, vPollP, vKVb = 32, 33, 34, 35
vSel = 36
vC1, vC2 = 40, 42
vSum = 44
vT = 48
vOnes = vT + 8
vW = 64
vA, vB, vX = 112, 144, 176
vK, vV, vQ = 208, 224, 240

def vr(b, n=4): return f"v[{b}:{b+n-1}]"
def ar(b, n=4): return f"a[{b}:{b+n-1}]"
def srd(b): return f"s[{b}:{b+3}]"

class Gen:
    def __init__(self, stamps=False, opts=None):
        self.e = E(); self.stamps = stamps; self.snames = []
        self.o = dict(D=16)
        if opts: self.o.update(opts)
        self.peel = False
        self.ring_free_upto = -1
    def stamp(self, name):
        if self.stamps:
            if name not in self.snames: self.snames.append(name)
            idx = self.snames.index(name); assert idx < 64
            e = self.e
            e("s_memtime s[98:99]\n s_memrealtime s[100:101]\n s_waitcnt lgkmcnt(0)")
            e.lg_done = e.lg_n
            e("v_mov_b32 v0, s98")
            e.vm(f"buffer_store_dword v0, v{vFlagOff}, {srd(SRD_WS)}, s{sStamp} offen offset:{8*idx}")
            e(f"s_lshl_b32 s99, s{sSpin}, 24\n s_and_b32 s100, s100, 0xffffff\n s_or_b32 s100, s100, s99\n v_mov_b32 v0, s100")
            e.vm(f"buffer_store_dword v0, v{vFlagOff}, {srd(SRD_WS)}, s{sStamp} offen offset:{8*idx+4}")
    def fstamp(self, fill, t, name):
        if self.stamps: fill[t].insert(0, lambda e_: self.stamp(name))
    EV = {1: (sLkvS, sLkvP, 2), 2: (sLkvS, sLkvP, 2), 3: (sLrow, sLrow, 16), 4: (sLrow, sLrow, 16), 5: (sLcol, sLcol, 16), 6: (sLrow, sLrow, 16),
          7: (sLh, sLh, 4), 8: (sLh, sLh, 4), 9: (sLh, sLh, 4), 10: (sLh, sLh, 4), 11: (sLp, sLp, 4), 12: (sLp1, sLp1, 2), 13: (sLrow, sLrow, 16)}
    def flag_items(self, ev, after, ret=False):
        if ret: return [f"v_mov_b32 v{vPoll}, 1", ("wait", after), ("vm", f"buffer_atomic_add v{vPoll}, v{vFlagOff}, {srd(SRD_WS)}, s{self.EV[ev][0]} offen offset:{4*ev} sc0 sc1", "poll")]
        return [("wait", after), ("vm", f"buffer_atomic_add v{vFlagVal}, v{vFlagOff}, {srd(SRD_WS)}, s{self.EV[ev][0]} offen offset:{4*ev} sc1")]
    def poll_load(self, ev, tag="poll"):
        if ev == "dbg": return [("vm", f"buffer_load_dword v{vPoll}, v0, {srd(SRD_DBG)}, 0 offen sc1", tag)]
        return [f"v_mov_b32 v{vPoll}, 0", ("vm", f"buffer_atomic_add v{vPoll}, v{vFlagOff}, {srd(SRD_WS)}, s{self.EV[ev][1]} offen offset:{4*ev} sc0 sc1", tag)]
    def poll_test(self, ev, label, fail, own=0):
        if ev == "dbg": return [f"v_cmp_gt_u32 vcc, 16, v{vPoll}", f"s_cbranch_{'vccnz' if fail else 'vccz'} {label}"]
        return [f"v_readfirstlane_b32 s{sT0}, v{vPoll}", f"s_cmp_lt_u32 s{sT0}, {self.EV[ev][2] - own}", f"s_cbranch_{'scc1' if fail else 'scc0'} {label}"]
    def spin(self, ev, lp, sleep):
        it = [f"s_sleep {sleep}"] if sleep else []
        it += [x if isinstance(x, str) else x[1] for x in self.poll_load(ev)]
        it += [f"s_add_u32 s{sSpin}, s{sSpin}, 1", f"s_cmp_ge_u32 s{sSpin}, 0x40000", "s_cbranch_scc1 Lend", "s_waitcnt vmcnt(0)"]
        return it + self.poll_test(ev, lp, True)
    def poll_check(self, ev):
        def f(e):
            slow = e.newlabel("slow"); back = e.newlabel("back")
            e.wait(vm="poll")
            for x in self.poll_test(ev, slow, True): e(x)
            e.label(back)
            e.tail += [slow + ":"] + self.spin(ev, slow, 0) + [f"s_branch {back}"]
        f.cost = 16
        return f
    def poll_wait(self, ev, sleep=0, own=0):
        e = self.e
        lp = e.newlabel("pw"); ok = e.newlabel("pok")
        e.wait(vm="poll")
        for x in self.poll_test(ev, ok, False, own): e(x)
        e.raw("; opt-begin")
        e.label(lp)
        for x in self.spin(ev, lp, sleep): e.raw(x)
        e.raw("; opt-end")
        e.label(ok)
    def stage_desc(self, s):
        if s < 24:
            c = s // 8; col = [2048, 4096, 0][c]
            return SRD_QKV, vBQ, 8*6144 - 1024, col, sRot8 + s % 8, 96, s % 8 == 0
        if s < 32:
            h = (s - 24) // 4
            return SRD_WO, vBO, 4*2048 - 1024, h*32*2048, sRot4 + s % 4, 64, s % 4 == 0
        if s < 56:
            c = (s - 32) // 8
            return SRD_W1, vB1, 8*7168 - 1024, 2048*c, sRot8 + s % 8, 112, s % 8 == 0
        if s < 60: return SRD_W1, vB1h, 8*7168 - 1024, 0, "lit", (s - 56)*256*7168, s == 56
        return SRD_W2, vB2, 8*2048 - 1024, 0, None, None, s == 60
    F2U = [(c, k+d) for k in (0, 2, 4) for c in (0, 1) for d in (0, 1)] + [(0, 6), (1, 6)] + [(2, k) for k in range(7)] + [(3, k) for k in range(7)]
    F2X = (2, 3, 1, 0)
    def dma_items(self, s, force_first=None, nochk=False):
        sr, base, step, const, tab, mul, first = self.stage_desc(s % 88)
        if force_first is not None: first = force_first
        if self.o.get("whit"): sr, base, step, const, mul, tab = SRD_WO, vB2, 8*2048 - 1024, 0, 32, sRot8 + s % 8
        it = []
        if first:
            for i in range(4):
                k = const + i*step
                it.append(f"v_add_u32 v{vD+i}, {k}, v{base}" if k else f"v_mov_b32 v{vD+i}, v{base}")
        def chk(e, s=s):
            assert nochk or s <= self.ring_free_upto, (s, self.ring_free_upto)
        if tab == "lit":
            it.append([chk, f"s_mov_b32 s{sOffW}, {mul}"])
        elif tab is not None:
            it.append([chk, f"s_mul_i32 s{sOffW}, s{tab}, {mul}"])
        else:
            ch, ks = self.F2U[s - 60]
            if ks < 6:
                it.append([chk, f"s_add_u32 s{sOffW}, s{sF+ch}, s{sPar1 if ks & 1 else sPar0}"])
                if ks >= 2: it.append(f"s_add_u32 s{sOffW}, s{sOffW}, {(ks//2)*1024*2048}")
            else:
                it.append([chk, f"s_lshl_b32 s{sOffW}, s{sHs}, 5"])
                it.append(f"s_sub_u32 s{sOffW}, s{sF+ch}, s{sOffW}")
                it.append(f"s_add_u32 s{sOffW}, s{sOffW}, {3072*2048}")
        it.append(f"s_add_u32 m0, s{sLdsW}, {self.slot(s)*16384}")
        for i in range(4):
            off = f" offset:{i*1024}" if i else ""
            if self.o.get("nodma") and i < 3 and s % 88 >= 8: continue
            it.append(("vm", f"buffer_load_dwordx4 v{vD+i}, {srd(sr)}, s{sOffW} offen{off} lds", ("W", s)))
        return [it[:-3]] + it[-3:]
    def xload_items(self, tab, base, pos0, tagname):
        if self.o.get("xhit"): base = sXA; tab = sRot8 + (pos0//4) % 8
        it = [f"s_add_u32 s{sOffX}, s{tab}, s{base}"] if tab is not None else list(base)
        for n in range(8):
            p = pos0 + n // 2; reg = (p % 32)*8 + (n % 2)*4
            off = f" offset:{(n % 4)*1024}" if n % 4 else ""
            it.append(("vm", f"buffer_load_dwordx4 {ar(reg)}, v{vL16 if n < 4 else vL16b}, {srd(SRD_WS)}, s{sOffX} offen{off} sc1", (tagname, p)))
        return [it[:-7]] + it[-7:]
    def slot(self, stage):
        return 4 + stage % 4 if self.peel and stage < 8 else stage % 8
    def frag_reads(self, stage, frs, buf, tag):
        it = []
        slot = self.slot(stage)
        for n, (s, q) in enumerate(frs):
            for jj in range(2):
                off = (slot % 4)*16384 + s*4096 + jj*2048
                d = vW + buf*16 + n*4 + jj*2
                it.append(("ds", f"ds_read_b64_tr_b16 {vr(d,2)}, v{vRd + (slot//4)*4 + q} offset:{off}", tag))
        return it
    @staticmethod
    def cost(it):
        if isinstance(it, str):
            return 16 if it.startswith("v_mfma") else 8 if it.startswith(("v_exp", "v_rcp", "v_rsq")) else 4
        if callable(it): return getattr(it, "cost", 0)
        if isinstance(it, list): return sum(Gen.cost(x) for x in it)
        if it[0] == "vm": return 32 if "store_dwordx4" in it[1] else 8
        return 4
    def pre_reads(self, name, stage0, steps):
        for t in range(2):
            for it in self.frag_reads(stage0, steps[t]["fr"], t % 3, (name, t)): self.e.item(it)
    @staticmethod
    def flat(items):
        out = []
        for it in items:
            if isinstance(it, list): out += Gen.flat(it)
            else: out.append(it)
        return out
    @staticmethod
    def kind(it):
        if isinstance(it, str):
            if it.startswith("s_"): return "s"
            if it.startswith(("v_exp", "v_rcp", "v_rsq")): return "t"
            return "m" if it.startswith("v_mfma") else "v"
        if callable(it): return "c" if getattr(it, "cost", 0) else "z"
        return "s" if it[0] == "wait" else "d"
    def run(self, name, stage0, steps, fill, t_end=None, labels={}):
        e = self.e; n = len(steps)
        def head(t):
            st = steps[t]; nt = t + 2; waits_vm = []; bar = False
            if st.get("xtag") is not None: waits_vm.append(st["xtag"])
            lg = [(name, t)] + st.get("lgtags", [])
            if self.peel and nt % 4 == 0 and nt < 32:
                e.wait(vm=("W", nt//4), lg=lg); e("s_barrier")
                self.ring_free_upto = {6: 9, 7: 11}.get(nt//4, min(7, nt//4 + 2))
                return
            if nt < n and nt % 8 == 0:
                waits_vm.append(("W", stage0 + nt//4 + 1)); bar = True
            e.wait(vm=waits_vm if waits_vm else None, lg=lg)
            if bar:
                if not self.o.get("nobar"): e("s_barrier")
                self.ring_free_upto = max(self.ring_free_upto, stage0 + nt//4 + 5)
        head(0)
        for t, st in enumerate(steps[:t_end]):
            nt = t + 2; self.cur_step = t
            if t in labels: e.label(labels[t])
            reads = self.frag_reads(stage0 + nt//4, steps[nt]["fr"], nt % 3, (name, nt)) if nt < n else []
            fl = self.flat(fill[t])
            P = self.o.get("prof_" + name)
            if P:
                t0 = self.o.get("prof0", 0)
                if t > t0 and (t-t0-1) % P == 0 and (t-t0-1)//P < 64: fl.insert(0, f"v_writelane_b32 v{vProf}, s100, {(t-t0-1)//P}")
                if t >= t0 and (t-t0) % P == 0 and (t-t0)//P < 64: fl.insert(0, "s_memtime s[100:101]")
            rem = sum(self.cost(x) for x in fl if self.kind(x) != "s"); fi = 0
            for m, (acc, fr, x, first) in enumerate(st["mm"]):
                w = vr(vW + (t % 3)*16 + fr*4); xx = ar(x); a = vr(acc)
                a_, b_ = (xx, w) if st.get("swap") else (w, xx)
                if m == 7:
                    while any(self.kind(y) in "dc" for y in fl[fi:]): e.item(fl[fi]); fi += 1
                e(f"v_mfma_f32_16x16x32_bf16 {a}, {a_}, {b_}, {'0' if first else a}")
                while fi < len(fl) and self.kind(fl[fi]) == "z": e.item(fl[fi]); fi += 1
                if m == 7:
                    if t + 1 < n: head(t + 1)
                elif fi < len(fl) and self.kind(fl[fi]) == "s":
                    e.item(fl[fi]); fi += 1
                if reads: e.item(reads[m])
                quota = max(4, rem/(8 - m)); g = 0; last = None
                while fi < len(fl):
                    it = fl[fi]; k = self.kind(it); c = self.cost(it)
                    if m < 7:
                        left = len(fl) - fi
                        if k == "s" and g >= 4 and left <= 2*(6 - m): break
                        if k != "z" and g > 0 and g + c/2 > quota: break
                        if k == "d" and last == "t": break
                    e.item(it); fi += 1; g += c; last = k
                    if k != "s": rem -= c
    @staticmethod
    def spread(fill, items, t0, t1):
        n = len(items); span = t1 - t0
        for i, it in enumerate(items): fill[t0 + i*span//n].append(it)
    def pcost(self, it):
        return sum(1 if self.kind(x) == "s" else self.cost(x) for x in self.flat([it]))
    def pour(self, fill, items, t0, t1, bonus=None):
        base = [sum(map(self.pcost, fill[t])) - (bonus(t) if bonus else 0) for t in range(t0, t1)]
        need = sum(map(self.pcost, items))
        lo, hi = min(base), max(base) + need
        for _ in range(40):
            mid = (lo + hi)/2
            if sum(max(0, mid - b) for b in base) >= need: hi = mid
            else: lo = mid
        cum = 0; used = 0; k = 0
        for i, t in enumerate(range(t0, t1)):
            cum += max(0, hi - base[i]); mine = []
            while k < len(items) and (used + self.pcost(items[k])/2 <= cum or t == t1-1):
                used += self.pcost(items[k]); mine.append(items[k]); k += 1
            old = fill[t]; out = []; a = b = 0
            while a < len(old) or b < len(mine):
                if b >= len(mine) or (a < len(old) and a*len(mine) <= b*len(old)): out.append(old[a]); a += 1
                else: out.append(mine[b]); b += 1
            fill[t] = out
    def chunk_steps(self, acc, swap=False, xtag=None, inplace=False, nst=8, std=()):
        out = []
        for st in range(nst):
            xr = lambda s, tt: ((4*st + s) % 32)*8 + 4*tt
            f0 = st == 0 and not inplace
            for u in range(4):
                if st in std:
                    out.append(dict(fr=[(u, q) for q in range(4)], swap=swap, xtag=(xtag, 4*st+u) if xtag else None,
                                    mm=[(acc + 8*q + 4*tt, q, xr(u, tt), f0 and u == 0) for q in range(4) for tt in range(2)]))
                else:
                    mm = [(acc + 8*u, s, xr(s, 0), f0 and s == 0) for s in range(4)] + [(acc + 8*u + 4, s, xr(s, 1), f0 and s == 3) for s in (3, 2, 1, 0)]
                    out.append(dict(fr=[(s, u) for s in range(4)], swap=swap, xtag=(xtag, 4*st+3) if xtag else None, mm=mm))
        return out
    def stage_steps(self, acc, ks, first, xtag=None):
        out = []
        for u in range(4):
            xr = lambda s, tt: (4*ks + s)*8 + 4*tt
            mm = [(acc + 8*u, s, xr(s, 0), first and s == 0) for s in range(4)] + [(acc + 8*u + 4, s, xr(s, 1), first and s == 3) for s in (3, 2, 1, 0)]
            out.append(dict(fr=[(s, u) for s in range(4)], xtag=xtag, mm=mm))
        return out
    def half_steps(self, acc):
        out = []
        for st in range(4):
            for q in (0, 2, 1, 3):
                xr = lambda s, tt: (8*st + 4*(q >> 1) + s)*8 + 4*tt
                f0 = st == 0 and q < 2; a = acc + 8*(q & 1)
                mm = [(a, s, xr(s, 0), f0 and s == 0) for s in range(4)] + [(a + 4, s, xr(s, 1), f0 and s == 3) for s in (3, 2, 1, 0)]
                out.append(dict(fr=[(s, q) for s in range(4)], xtag=None, mm=mm))
        return out
    def at_least(self, t):
        def f(e): assert self.cur_step >= t, (self.cur_step, t)
        return f
    def cond0(self, body, pad=7):
        def f(e):
            skip = e.newlabel("c0")
            e(f"s_cmp_lg_u32 s{sLayer}, 0\n s_cbranch_scc1 {skip}")
            e2 = E(); e2.uid = e.uid + 1000
            save = self.e; self.e = e2
            body(e2)
            self.e = save; e.uid = e2.uid
            e.ins += ["; opt-begin"] + e2.ins + ["; opt-end"]
            e.tail += e2.tail
            e.label(skip)
        f.cost = 8
        return f
    def stats_load_items(self, base):
        it = []
        for i in range(4):
            off = f" offset:{i*1024}" if i else ""
            it.append(("vm", f"buffer_load_dwordx4 {vr(vK+4*i)}, v{vL16}, {srd(SRD_WS)}, s{base} offen{off} sc1", "stats"))
        return it
    def stats_items(self, mode):
        it = [("wait", "stats")]
        for k in range(4): it.append(f"v_add_f32 v{vK+k}, v{vK+k}, v{vK+4+k}")
        for k in range(4): it.append(f"v_add_f32 v{vK+8+k}, v{vK+8+k}, v{vK+12+k}")
        for k in range(4): it.append(f"v_add_f32 v{vK+k}, v{vK+k}, v{vK+8+k}")
        for sw in ("v_permlane32_swap_b32", "v_permlane16_swap_b32"):
            for k in range(4): it.append(f"v_mov_b32 v{vK+4+k}, v{vK+k}")
            for k in range(4): it.append(f"{sw} v{vK+k}, v{vK+4+k}")
            for k in range(4): it.append(f"v_add_f32 v{vK+k}, v{vK+k}, v{vK+4+k}")
        for tt in range(2): it.append(f"v_mul_f32 v{vC2+tt}, {hex(f2u(-1.0/1024))}, v{vK+2*tt}")
        for tt in range(2): it.append(f"v_mul_f32 v{vK+2*tt+1}, {hex(f2u(1.0/1024))}, v{vK+2*tt+1}")
        for tt in range(2): it.append(f"v_fma_f32 v{vK+2*tt+1}, -v{vC2+tt}, v{vC2+tt}, v{vK+2*tt+1}")
        for tt in range(2): it.append(f"v_max_f32 v{vK+2*tt+1}, 0, v{vK+2*tt+1}")
        for tt in range(2): it.append(f"v_add_f32 v{vK+2*tt+1}, {hex(f2u(1e-5))}, v{vK+2*tt+1}")
        for tt in range(2): it.append(f"v_rsq_f32 v{vC1+tt}, v{vK+2*tt+1}")
        if mode == "ffn":
            it.append("s_nop 0")
            for tt in range(2): it.append(f"v_mul_f32 v{vC1+tt}, {hex(f2u(-LOG2E))}, v{vC1+tt}")
        else:
            for k in (2, 3, 0, 1): it.append(("ds", f"ds_write_b32 v{vStW}, v{vC1+k} offset:{64*k}", "stw"))
        return it
    def vstat_reads(self):
        return [("wait", None, "stw")] + [("ds", f"ds_read_b128 {vr(vQ+4*k)}, v{vStR} offset:{64*k}", "str") for k in range(4)]
    def cs_reads(self, tile, nq=4, extra=None):
        it = []
        for q in range(nq):
            it.append(("ds", f"ds_read_b128 {vr(vT+4*q)}, v{extra if extra else vCsT} offset:{tile*256 + q*64}", "cs"))
        return it
    def kq_epilogue(self, acc, dst, c1, stores=None):
        it = [("wait", None, "cs")]
        for hh in range(2):
            for tt in range(2):
                for q in (2*hh, 2*hh+1):
                    a = acc + 8*q + 4*tt
                    for r in range(4): it.append(f"v_fmac_f32 v{a+r}, v{vT+4*q+r}, v{vC2+tt}")
                    for r in range(4): it.append(f"v_mul_f32 v{a+r}, v{c1+tt}, v{a+r}")
                    for k in range(2): it.append(f"v_cvt_pk_bf16_f32 v{dst+8*hh+4*tt+2*(q&1)+k}, v{a+2*k}, v{a+2*k+1}")
            for k in range(4): it.append(f"v_permlane16_swap_b32 v{dst+8*hh+k}, v{dst+8*hh+4+k}")
            if stores: it += stores[2*hh:2*hh+2]
        return it
    def csv_reads(self):
        return [("ds", f"ds_read_b32 v{vT+q}, v{vCsV} offset:{256 + q*64}", "cs") for q in range(4)]
    def v_epilogue(self, acc, stores):
        it = [("wait", None, ["cs", "str"])]
        for hh in range(2):
            for tt in range(2):
                d = vV + 8*hh + 4*tt
                for q in (2*hh, 2*hh+1):
                    a = acc + 8*q + 4*tt
                    for r in range(4): it.append(f"v_fmac_f32 v{a+r}, v{vT+q}, v{vQ+8+4*tt+r}")
                    for r in range(4): it.append(f"v_mul_f32 v{a+r}, v{vQ+4*tt+r}, v{a+r}")
                    for k in range(2): it.append(f"v_cvt_pk_bf16_f32 v{d+2*(q&1)+k}, v{a+2*k}, v{a+2*k+1}")
            for sw in ("v_permlane16_swap_b32", "v_permlane32_swap_b32"):
                for tt in range(2):
                    d = vV + 8*hh + 4*tt
                    for k in range(2): it.append(f"{sw} v{d+k}, v{d+2+k}")
            it += stores[2*hh:2*hh+2]
        return it
    def kv_stores(self, src, vaddr, tag):
        it = []
        for n in range(4):
            off = f" offset:{n*1024}" if n else ""
            it.append(("vm", f"buffer_store_dwordx4 {vr(src+4*n)}, v{vaddr}, {srd(SRD_WS)}, s{sKVown} offen{off} sc1", tag))
        return it
    def silu_epilogue(self, acc, nq, hoff, tag):
        it = [("wait", None, "cs")]
        if nq == 2:
            for k in range(8): it.append(f"v_add_f32 v{vT+k}, v{vT+k}, v{vT+8+k}")
        P = vK; T = vV
        n = 0
        for kp in range(nq//2):
            for tt in range(2):
                for q in (2*kp, 2*kp+1):
                    a = acc + 8*q + 4*tt; t = T + 4*(n % 2); n += 1
                    if self.o.get("nosilu"): continue
                    for r in range(4): it.append(f"v_fmac_f32 v{a+r}, v{vT+4*q+r}, v{vC2+tt}")
                    for r in range(4): it.append(f"v_mul_f32 v{a+r}, v{vC1+tt}, v{a+r}")
                    for r in range(4): it.append(f"v_exp_f32 v{t+r}, v{a+r}")
                    for r in range(4): it.append(f"v_fma_f32 v{t+r}, v{t+r}, s{sK}, s{sK}")
                    for r in range(4): it.append(f"v_rcp_f32 v{t+r}, v{t+r}")
                    for r in range(4): it.append(f"v_mul_f32 v{a+r}, v{t+r}, v{a+r}")
                    for k in range(2): it.append(f"v_cvt_pk_bf16_f32 v{P+8*kp+4*tt+2*(q&1)+k}, v{a+2*k}, v{a+2*k+1}")
                off = kp*2048 + tt*1024
                st = ("vm", f"buffer_store_dwordx4 {vr(P+8*kp+4*tt)}, v{vL16}, {srd(SRD_WS)}, s{sT1} offen" + (f" offset:{off}" if off else "") + " sc1", tag)
                it.append(list(hoff) + [st])
        return it
    def partial_items(self, acc, ch, kp):
        pk = self.pack_items(kp, acc)
        ad = [f"s_xor_b32 s{sT1}, s{sJ}, {4*self.F2X[ch]}", f"s_mul_i32 s{sT1}, s{sT1}, 12288", f"s_add_u32 s{sT1}, s{sT1}, s{sP}"] + ([f"s_add_u32 s{sT1}, s{sT1}, {ch*4096}"] if ch else [])
        st = [("vm", f"buffer_store_dwordx4 {vr(vK+8*kp+4*tt)}, v{vL16}, {srd(SRD_WS)}, s{sT1} offen" + (f" offset:{kp*2048+tt*1024}" if kp or tt else "") + " sc1", ("ps", ch)) for tt in range(2)]
        return (ad if kp == 0 else []) + pk[:4] + [st[0]] + pk[4:] + [st[1]]
    def partial_reg(self, ch): return 224 + 16*(ch % 2)
    def partial_loads(self, ch):
        it = [f"s_mul_i32 s{sOffX}, s{sJ}, 12288", f"s_add_u32 s{sOffX}, s{sOffX}, s{sP}"] + ([f"s_add_u32 s{sOffX}, s{sOffX}, {ch*4096}"] if ch else [])
        for n in range(4):
            it.append(("vm", f"buffer_load_dwordx4 {ar(self.partial_reg(ch)+4*n)}, v{vL16}, {srd(SRD_WS)}, s{sOffX} offen" + (f" offset:{n*1024}" if n else "") + " sc1", ("pl", ch)))
        return it
    def ones_items(self): return [f"v_mov_b32 v{vOnes+k}, 0x3f803f80" for k in range(4)]
    def ident_items(self):
        it = [f"v_mov_b32 v{vT+k}, 0" for k in (0, 1, 4, 5)]
        it += [f"v_mov_b32 v{vT+6}, 0x3f80", f"v_mov_b32 v{vT+7}, 0x3f800000",
               f"v_cndmask_b32 v{vT+2}, v{vT+6}, v{vT+7}, s[{sM1}:{sM1+1}]", f"v_cndmask_b32 v{vT+3}, v{vT}, v{vT+6}, s[{sM2}:{sM2+1}]",
               f"v_cndmask_b32 v{vT+2}, v{vT+2}, v{vT}, s[{sM2}:{sM2+1}]", f"v_cndmask_b32 v{vT+3}, v{vT+3}, v{vT+7}, s[{sM3}:{sM3+1}]",
               f"v_cndmask_b32 v{vT+2}, v{vT+2}, v{vT}, s[{sM3}:{sM3+1}]",
               [f"v_cmp_gt_u32 vcc, 0x1000, v{vStatSt}", "s_nop 1", f"v_cndmask_b32 v{vT+2}, v{vT}, v{vT+2}, vcc", f"v_cndmask_b32 v{vT+3}, v{vT}, v{vT+3}, vcc"]]
        return it
    def partial_adds(self, x):
        it = [("wait", ("pl", x))]
        for q in range(4):
            for tt in range(2):
                a = vr(vX + 8*q + 4*tt)
                it.append(f"v_mfma_f32_16x16x32_bf16 {a}, {vr(vT + (0 if q & 1 else 2))}, {ar(self.partial_reg(x) + 8*(q >> 1) + 4*tt)}, {a}")
        return it
    def pack_items(self, kp, acc=vX):
        it = []
        for tt in range(2):
            for q in (2*kp, 2*kp+1):
                a = acc + 8*q + 4*tt
                for k in range(2): it.append(f"v_cvt_pk_bf16_f32 v{vK+8*kp+4*tt+2*(q&1)+k}, v{a+2*k}, v{a+2*k+1}")
        return it
    def xstore_items(self, kp):
        return [("vm", f"buffer_store_dwordx4 {vr(vK+8*kp+4*tt)}, v{vL16}, {srd(SRD_WS)}, s{sXcur} offen" + (f" offset:{kp*2048+tt*1024}" if kp or tt else "") + " sc1", "pub") for tt in range(2)]
    def pub_addr(self, xbase, xadd):
        return [f"s_lshl_b32 s{sXcur}, s{sJ}, 12", f"s_add_u32 s{sXcur}, s{sXcur}, s{xbase}"] + ([f"s_add_u32 s{sXcur}, s{sXcur}, {xadd}"] if xadd else [])
    def stats_mfma(self, kp):
        S = vV; it = []
        for tt in range(2):
            p = vr(vK + 8*kp + 4*tt)
            it.append(f"v_mfma_f32_16x16x32_bf16 {vr(S+8*tt+4)}, {p}, {p}, {'0' if kp == 0 else vr(S+8*tt+4)}")
            it.append(f"v_mfma_f32_16x16x32_bf16 {vr(S+8*tt)}, {vr(vOnes)}, {p}, {'0' if kp == 0 else vr(S+8*tt)}")
        return it
    def stats_addr(self, stbase, stadd):
        return [[f"s_lshl_b32 s3, s{sJ}, 8", f"s_add_u32 s3, s3, s{stbase}"] + ([f"s_add_u32 s3, s3, {stadd}"] if stadd else [])]
    def publish_tail(self):
        e = self.e; S = vV
        pk = self.pack_items(1); st = self.xstore_items(1); mf = self.stats_mfma(1)
        self.emit(pk[:4] + [st[0]] + mf[:2] + pk[4:] + [st[1]] + mf[2:])
        self.stats_store()
    def stats_store(self):
        e = self.e; S = vV
        for tt in range(2):
            g = S + 8*tt + 4
            e(f"v_cndmask_b32 v{vQ+2*tt+1}, v{g}, v{g+1}, s[{sM1}:{sM1+1}]")
            e(f"v_cndmask_b32 v{vQ+2*tt+1}, v{vQ+2*tt+1}, v{g+2}, s[{sM2}:{sM2+1}]")
            e(f"v_cndmask_b32 v{vQ+2*tt+1}, v{vQ+2*tt+1}, v{g+3}, s[{sM3}:{sM3+1}]")
            e(f"v_mov_b32 v{vQ+2*tt}, v{S+8*tt}")
        e.vm(f"buffer_store_dwordx4 {vr(vQ)}, v{vStatSt}, {srd(SRD_WS)}, s3 offen sc1", "pub")
    def emit(self, items):
        for it in items: self.e.item(it)
    def x_sched(self, fill, tag, tabs, first, last, t0):
        for st in range(first, last):
            self.spread(fill, self.xload_items(tabs[st][0], tabs[st][1], 4*st, tag), t0 + 4*(st-first), t0 + 4*(st-first) + 4)
    def w_schedule_head(self, fill, s0, last):
        self.spread(fill, self.dma_items(s0+8) + self.dma_items(s0+9), 16, 24)
        self.spread(fill, self.dma_items(s0+10) + self.dma_items(s0+11), 24, 30)
        for k in range(12, last - s0 + 1): self.spread(fill, self.dma_items(s0+k), 4*(k-4)-2, 4*(k-4)+2)
    def cs_selector(self, d):
        e = self.e
        e(f"v_bfe_u32 v0, v{vL16}, 4, 3")
        for k in range(4):
            e(f"v_cmp_eq_u32 vcc, {2*k}, v0\n v_mov_b32 v{d+4}, 0x3f80\n v_cndmask_b32 v{d+k}, 0, v{d+4}, vcc")
            e(f"v_cmp_eq_u32 vcc, {2*k+1}, v0\n v_mov_b32 v{d+4}, 0x3f800000\n v_cndmask_b32 v{d+k}, v{d+k}, v{d+4}, vcc")
    def rows_reduce(self, r):
        e = self.e
        for sw in ("v_permlane32_swap_b32", "v_permlane16_swap_b32"):
            for k in range(4): e(f"v_mov_b32 v{r+4+k}, v{r+k}")
            for k in range(4): e(f"{sw} v{r+k}, v{r+4+k}")
            for k in range(4): e(f"v_add_f32 v{r+k}, v{r+k}, v{r+4+k}")
    def cs_write_partials(self, acc, ntile, T):
        e = self.e
        e(f"v_bfe_u32 v{T}, v{vL16}, 7, 1\n v_lshlrev_b32 v{T}, 10, v{T}\n v_bfe_u32 v{T+1}, v{vL16}, 4, 3\n v_lshl_add_u32 v{T}, v{T+1}, 5, v{T}")
        e(f"v_bfe_u32 v{T+1}, v{vL16}, 8, 1\n v_lshl_add_u32 v{T}, v{T+1}, 4, v{T}\n v_add_u32 v{T}, s{sStg}, v{T}")
        for t in range(ntile): e.ds(f"ds_write_b128 v{T}, {vr(acc+4*t)} offset:{t*256}", "csw")
    def cs_addr(self, ntile, tile0, sh):
        self.e(f"s_min_u32 s{sT0}, s{sW}, {ntile-1}\n s_lshl_b32 s{sT1}, s{sJ}, 3\n s_add_u32 s{sT1}, s{sT1}, s{sT0}\n s_add_u32 s{sT1}, s{sT1}, {tile0}\n s_lshl_b32 s{sT1}, s{sT1}, {sh}")
    def cs_reduce_store(self, ntile, tile0, r, tag=None):
        e = self.e
        self.cs_addr(ntile, tile0, 4)
        e(f"s_add_u32 s{sT1}, s{sT1}, s{sG}\n s_lshl_b32 s{sT1}, s{sT1}, 8\n s_add_u32 s{sT1}, s{sT1}, {WS_CSP}\n s_lshl_b32 s{sT0}, s{sT0}, 8\n s_add_u32 s{sT0}, s{sT0}, {L_STG}")
        e(f"v_lshrrev_b32 v{r+8}, 8, v{vL16}\n v_mul_u32_u24 v{r+8}, {STGW}, v{r+8}\n v_and_b32 v{r+9}, 0xf0, v{vL16}\n v_add3_u32 v{r+8}, v{r+8}, v{r+9}, s{sT0}")
        for p in range(2): e.ds(f"ds_read_b128 {vr(r+4*p)}, v{r+8} offset:{p*1024}", "csr")
        e.wait(lg="csr")
        for k in range(4): e(f"v_add_f32 v{r+k}, v{r+k}, v{r+4+k}")
        self.rows_reduce(r)
        e.vm(f"buffer_store_dwordx4 {vr(r)}, v{vStatSt}, {srd(SRD_WS)}, s{sT1} offen sc1", tag)
    def cs_gather_loads(self, ntile, tile0, r):
        e = self.e
        self.cs_addr(ntile, tile0, 12)
        e(f"s_add_u32 s{sT1}, s{sT1}, {WS_CSP}")
        for i in range(4): e.vm(f"buffer_load_dwordx4 {vr(r+4*i)}, v{vL16}, {srd(SRD_WS)}, s{sT1} offen" + (f" offset:{i*1024}" if i else "") + " sc1", "csg")
    def cs_gather_finish(self, ntile, tile0, r):
        e = self.e
        for k in range(8): e(f"v_add_f32 v{r+k}, v{r+k}, v{r+8+k}")
        for k in range(4): e(f"v_add_f32 v{r+k}, v{r+k}, v{r+4+k}")
        self.rows_reduce(r)
        e(f"s_min_u32 s{sT0}, s{sW}, {ntile-1}\n s_lshl_b32 s{sT0}, s{sT0}, 8\n s_add_u32 s{sT0}, s{sT0}, {L_CS + tile0*256}\n v_and_b32 v{r+8}, 0xf0, v{vL16}\n v_add_u32 v{r+8}, s{sT0}, v{r+8}")
        e.ds(f"ds_write_b128 v{r+8}, {vr(r)}", "csf")
    def cs_consume_pieces(self, ev, ntile, tile0, r):
        main = self.e; pos = {}
        def a(e): e.item(self.poll_load(ev)); pos["a"] = main.vm_n
        def b(e):
            e(f"s_waitcnt vmcnt({main.vm_n - pos['a']})")
            e.vm_tag["poll"] = 0; self.poll_wait(ev)
            self.cs_gather_loads(ntile, tile0, r); pos["b"] = main.vm_n
        def c(e): e(f"s_waitcnt vmcnt({main.vm_n - pos['b']})"); self.cs_gather_finish(ntile, tile0, r)
        return self.cond0(a), self.cond0(b), self.cond0(c)
    def dummy(self): return 0 if any(k.startswith("prof_") for k in self.o) else vProf
    def prefetch(self, r):
        return [f"s_add_u32 s{sT0}, s{sPf}, {r*896*1024}", ("vm", f"buffer_load_dword v{self.dummy()}, v{vL16}, {srd(SRD_X)}, s{sT0} offen")]
    def helper(self, kind, arg):
        if self.o.get("nohelp"): return []
        d = self.dummy()
        if kind == "f": return [("vm", f"buffer_load_dword v{d}, v{vB2}, {srd(SRD_W2)}, s{sHF+arg} offen")]
        if kind == "wo":
            return [f"s_lshl_b32 s{sT0}, s{sHrow}, 11", f"s_or_b32 s{sT1}, s{sJ}, 7", f"s_sub_u32 s{sT1}, s{sT1}, 4", f"s_lshl_b32 s{sT1}, s{sT1}, 7", f"s_add_u32 s{sT0}, s{sT0}, s{sT1}",
                    ("vm", f"buffer_load_dword v{d}, v{vB2}, {srd(SRD_WO)}, s{sT0} offen")]
        sr, base, rs = (SRD_QKV, vBQ, 6144) if kind == "qkv" else (SRD_W1, vB1, 7168)
        it = [f"s_mul_i32 s{sT0}, s{sHrow}, {rs}"]
        if kind == "half": it += [f"s_lshl_b32 s{sT1}, s{sJ}, 7", f"s_sub_u32 s{sT0}, s{sT0}, s{sT1}", f"s_add_u32 s{sT0}, s{sT0}, {6144 + 384}"]
        else: it += [f"s_add_u32 s{sT0}, s{sT0}, s{sHcol}"] + ([f"s_add_u32 s{sT0}, s{sT0}, {arg}"] if arg else [])
        return it + [("vm", f"buffer_load_dword v{d}, v{base}, {srd(sr)}, s{sT0} offen")]
    def w1_share_dma(self, pieces):
        def body(e):
            e(f"s_mov_b32 s3, m0")
            for n in pieces:
                if n == pieces[0] or n == 6:
                    sh, mk = (7, 0x70) if n < 6 else (6, 0x30)
                    e(f"s_lshl_b32 s{sT0}, s{sTB}, 4\n v_lshrrev_b32 v0, {sh}, v{vL16}\n v_add_u32 v0, s{sT0}, v0\n v_mul_u32_u24 v0, 7168, v0\n v_and_b32 v{vSum+3}, {mk}, v{vL16}\n v_add_u32 v0, v0, v{vSum+3}")
                    e(f"s_lshl_b32 s{sT1}, s{sJ}, {sh}")
                e(f"s_add_u32 m0, s{sStg}, {n*1024}")
                e(f"s_add_u32 s{sT0}, s{sT1}, {(n//2)*2048 + (n % 2)*8*7168}")
                e.vm(f"buffer_load_dwordx4 v0, {srd(SRD_W1)}, s{sT0} offen lds")
            e(f"s_mov_b32 m0, s3")
        return self.cond0(body)
    def cs_produce(self):
        def body(e):
            e(f"v_add_u32 v{vB+31}, s{sStg}, v{vL16}")
            for n in range(7): e.ds(f"ds_read_b128 {vr(vB+4*n)}, v{vB+31} offset:{n*1024}")
            self.cs_selector(vT)
            e.wait(lg="all")
            for n in range(7):
                d = vr(vA + 4*(n//2))
                e(f"v_mfma_f32_16x16x32_bf16 {d}, {vr(vT)}, {vr(vB+4*n)}, {'0' if n % 2 == 0 else d}")
            self.cs_write_partials(vA, 4, vB + 28)
        return self.cond0(body)
    def cs_produce_b(self): return self.cond0(lambda e: self.cs_reduce_store(4, 3, vB))
    def kfrag(self, hh, b, s): return ar(128*hh + 8*b + 4*s) if b < 8 else vr(vK + 8*hh + 4*s)
    def vfrag(self, hh, b, s): return ar(128*hh + 64 + 8*b + 4*s) if b < 8 else vr(vV + 8*hh + 4*s)
    def kv_dma_items(self, isv):
        it = []
        for i in range(2):
            it.append(f"s_add_u32 m0, s{sLdsW2}, {isv*49152 + i*4096}")
            for n in range(4):
                it.append(("vm", f"buffer_load_dwordx4 v{vL16b if isv else vL16}, {srd(SRD_WS)}, s{sKVb+i} offen" + (f" offset:{n*1024}" if n else "") + " sc1 lds", ("kvd", isv)))
        return it
    def kv_own_writes(self, isv):
        return [("ds", f"ds_write_b128 v{vKVb if isv else vKVa}, {vr((vV if isv else vK) + 4*n)} offset:{32768 + n*1024}", ("kvw", isv)) for n in range(4)]
    def kv_reads(self, isv, hh, b):
        return [("ds", f"ds_read_b128 {ar(128*hh + 64*isv + 8*b + 4*s)}, v{vKVb if isv else vKVa} offset:{b*4096 + hh*2048 + s*1024}", ("kv", isv, hh, b)) for s in range(2)]
    def mask_items(self):
        MD, MO = vB, vB + 16; vFD = vM
        it = [f"v_bfe_u32 v{MD}, v{vL16}, 4, 5", f"v_lshrrev_b32 v{vFD}, 9, v{vL16}", f"v_lshlrev_b32 v{vFD}, 2, v{vFD}",
              f"v_sub_u32 v{vFD}, v{MD}, v{vFD}", f"v_cvt_f32_i32 v{vFD}, v{vFD}"]
        for r in range(16):
            c = float(8*(r >> 2) + (r & 3))
            it.append([f"s_mov_b32 s{sT1}, {hex(f2u(c))}", f"v_sub_f32_e64 v{MD+r}, s{sT1}, v{vFD} clamp"])
            it.append(f"v_sub_f32 v{MO+r}, 1.0, v{MD+r}")
            it.append(f"v_mul_f32 v{MD+r}, {hex(f2u(-1e30))}, v{MD+r}")
            it.append(f"v_mul_f32 v{MO+r}, {hex(f2u(-1e30))}, v{MO+r}")
        return it
    def masked(self, b, ops):
        if b >= 8: return list(ops)
        return [f"s_bfe_i64 exec, s[{sVal}:{sVal+1}], {hex(0x10000 | b)}"] + list(ops) + ["s_mov_b64 exec, -1"]
    def attention(self, side1, side2, final_side):
        e = self.e
        MD, MO = vB, vB + 16; TF = vW; S = [vW + 16, vW + 32]; S2 = vA; O = [vA + 16, vA + 16]; P = [vT, vT + 8]
        m = [vM, vC2]
        qk = lambda hh, b, d, c: [f"v_mfma_f32_32x32x16_bf16 {vr(d,16)}, {self.kfrag(hh,b,0)}, {vr(vQ+8*hh)}, {c}",
                                  f"v_mfma_f32_32x32x16_bf16 {vr(d,16)}, {self.kfrag(hh,b,1)}, {vr(vQ+8*hh+4)}, {vr(d,16)}"]
        def s1(n):
            hh, b = divmod(n, 9)
            if b < 8: e.wait(lg=("kv", 0, hh, b))
            return qk(hh, b, S[b % 2], vr(MO, 16) if b == 0 else vr(MD, 16) if b == 8 else "0")
        def tile(n):
            hh, b = divmod(n, 9)
            return S2 if b == 8 else S[b % 2]
        def s2(n):
            hh, b = divmod(n, 9)
            return qk(hh, b, tile(n), vr(tile(n), 16) if b in (0, 8) else vr(TF, 16))
        def pv(n):
            hh, b = divmod(n, 9); p = P[b % 2]; o = vr(O[hh], 16)
            if b < 8: e.wait(lg=("kv", 1, hh, b))
            return [f"v_mfma_f32_32x32x16_bf16 {o}, {self.vfrag(hh,b,0)}, {vr(p)}, {'0' if b == 0 else o}",
                    f"v_mfma_f32_32x32x16_bf16 {o}, {self.vfrag(hh,b,1)}, {vr(p+4)}, {o}",
                    f"v_mfma_f32_16x16x32_bf16 {vr(vSum)}, {vr(vSel)}, {vr(p)}, {'0' if b == 0 else vr(vSum)}",
                    f"v_mfma_f32_16x16x32_bf16 {vr(vSum)}, {vr(vSel)}, {vr(p+4)}, {vr(vSum)}"]
        fin = lambda hh: [f"v_mov_b32 v0, v{m[hh]}", [f"v_permlane32_swap_b32 v{m[hh]}, v0", f"v_max_f32 v{m[hh]}, v{m[hh]}, v0"]]
        init = lambda d, src, hh: [f"v_sub_f32 v{d+r}, {'0' if src is None else 'v%d' % (src+r)}, v{m[hh]}" for r in range(16)]
        def zero(p, n):
            def f(e_):
                l = e_.newlabel("z"); e_(f"s_cmp_eq_u32 s{sNinv}, 0\n s_cbranch_scc1 {l}")
                e_.raw("; opt-begin")
                for r in range(n): e_(f"v_mov_b32 v{p+r}, 0")
                e_.raw("; opt-end"); e_.label(l)
            f.cost = 8
            return f
        def tail(hh):
            it = [f"v_mul_f32 v{O[hh]+r}, v{vC1}, v{O[hh]+r}" for r in range(16)]
            it += [f"v_cvt_pk_bf16_f32 v{S2+k}, v{O[hh]+2*k}, v{O[hh]+2*k+1}" for k in range(8)]
            it += [f"v_permlane16_swap_b32 v{S2+k}, v{S2+4+k}" for k in range(4)]
            it += [("vm", f"buffer_store_dwordx4 {vr(S2+4*tt)}, v{vL16}, {srd(SRD_WS)}, s3 offen" + (" offset:1024" if tt else "") + " sc1", ("o", hh)) for tt in range(2)]
            return it
        oaddr = lambda hh: [[f"s_lshl_b32 s3, s{sJ}, 11", f"s_add_u32 s3, s3, s{sXcur if hh else sO}"]]
        def mix(a, b):
            out = []; x = y = 0
            while x < len(a) or y < len(b):
                if y >= len(b) or (x < len(a) and x*len(b) <= y*len(a)): out.append(a[x]); x += 1
                else: out.append(b[y]); y += 1
            return out
        def seg1(hh, b, mm, sd):
            sd = self.flat(sd); ng = max(1, len(mm))
            for g in range(ng):
                if mm: e(mm[g])
                self.emit(sd[g*len(sd)//ng:(g+1)*len(sd)//ng])
            s = S[b % 2]
            self.emit(self.masked(b, [f"v_max3_f32 v{m[hh]}, v{m[hh]}, v{s+2*k}, v{s+2*k+1}" for k in range(8)]))
        def seg2(n, mm, sd):
            hh, b = divmod(n, 9); s = tile(n); p = P[b % 2]
            ex = [f"v_exp_f32 v{s+r}, v{s+r}" for r in range(16)]
            sd = self.flat(sd); cuts = [0, 3, 6, 9, 12, 14, 16]; ng = len(mm)
            for g in range(6):
                if g < ng:
                    e(mm[g]); self.emit(sd[g*len(sd)//ng:(g+1)*len(sd)//ng])
                self.emit(ex[cuts[g]:cuts[g+1]])
            self.emit(self.masked(b, [f"v_cvt_pk_bf16_f32 v{p+k}, v{s+2*k}, v{s+2*k+1}" for k in range(8)]))
        e(f"v_mov_b32 v{m[0]}, 0xff800000")
        self.emit(s1(0))
        for hh in range(2):
            own = [[] for _ in range(9)]
            if hh:
                own[1] = [f"v_rcp_f32 v{vC1}, v{vSum}"] + oaddr(0); self.spread(own, tail(0), 1, 3)
            own[8].append(zero(P[0], 16))
            for b in range(9):
                mm = s1(9*hh + b + 1) if b < 8 else []
                if hh and b == 0:
                    pp = pv(8); mm = [pp[2], pp[3], pp[0], pp[1]] + mm
                seg1(hh, b, mm, mix(side1[9*hh+b], own[b]))
            self.stamp(f"p1{'ab'[hh]}_end")
            mm = s2(9*hh); tf = init(TF, None, hh)
            self.emit(fin(hh) + init(S[0], MO, hh) + tf[:2] + [mm[0]] + tf[2:8] + [mm[1]] + tf[8:] + init(S2, MD, hh))
            for b in range(9):
                n = 9*hh + b; own = []
                mm = s2(n+1) if b < 8 else s1(9) if hh == 0 else []
                if b >= 1: mm = mm + pv(n-1)
                if n == 7: own = [f"v_mov_b32 v{m[1]}, 0xff800000"]
                seg2(n, mm, mix(side2[n], own))
            if hh == 0: self.stamp("p2a_end")
        mm = pv(17); fs = self.flat(oaddr(1) + final_side)
        for g, x in enumerate([mm[2], mm[3], mm[0], mm[1]]):
            e(x); self.emit(fs[g*len(fs)//4:(g+1)*len(fs)//4])
        e(f"v_rcp_f32 v{vC1}, v{vSum}")
        self.emit(tail(1))
    def setup(self):
        e = self.e
        if self.stamps: e("s_memtime s[92:93]\n s_memrealtime s[94:95]")
        e("s_cmp_ge_u32 s2, 256\n s_cbranch_scc1 Lend")
        e("s_load_dwordx16 s[48:63], s[0:1], 0\n s_load_dwordx2 s[64:65], s[0:1], 64")
        e(f"v_lshrrev_b32 v1, 6, v0\n v_and_b32 v0, 63, v0\n v_readfirstlane_b32 s{sW}, v1")
        e(f"s_and_b32 s{sT0}, s2, 7\n s_lshr_b32 s{sT1}, s2, 3")
        e(f"s_lshr_b32 s{sG}, s{sT0}, 1\n s_lshl_b32 s{sG}, s{sG}, 2\n s_lshr_b32 s3, s{sT1}, 3\n s_add_u32 s{sG}, s{sG}, s3")
        e(f"s_and_b32 s{sJ}, s{sT0}, 1\n s_lshl_b32 s{sJ}, s{sJ}, 3\n s_and_b32 s3, s{sT1}, 7\n s_add_u32 s{sJ}, s{sJ}, s3")
        e(f"s_lshl_b32 s{sTB}, s{sG}, 2\n s_add_u32 s{sTB}, s{sTB}, s{sW}")
        e(f"s_lshl_b32 s{sLdsW}, s{sW}, 12\n s_mov_b32 s{sLayer}, 0\n s_mov_b32 s{sSpin}, 0")
        e(f"v_and_b32 v44, 15, v0\n v_lshrrev_b32 v45, 4, v0\n v_lshrrev_b32 v46, 3, v0")
        e(f"v_and_b32 v61, 7, v0\n v_lshlrev_b32 v61, 4, v61\n v_lshl_add_u32 v62, v46, 11, v61")
        e(f"s_lshl_b32 s{sT0}, s{sTB}, 4\n v_add_u32 v60, s{sT0}, v46\n v_mul_u32_u24 v60, 6144, v60\n v_add_u32 v60, v60, v61")
        e(f"v_min_u32 v58, 3, v46\n v_lshl_add_u32 v58, v58, 10, v61\n v_min_u32 v59, 5, v46\n v_lshl_add_u32 v59, v59, 10, v61")
        e(f"s_lshl_b32 s{sOffX}, s2, 2\n s_add_u32 s{sOffX}, s{sOffX}, s{sW}\n s_mul_i32 s{sOffW}, s{sOffX}, 6144\n s_lshl_b32 s{sOffX}, s{sOffX}, 12")
        e(f"s_lshl_b32 s{sXcur}, s{sTB}, 16\n s_lshl_b32 s{sT1}, s{sJ}, 7\n s_add_u32 s{sT0}, s{sXcur}, s{sT1}")
        e(f"s_mul_i32 s{sStg}, s{sW}, {STGW}\n s_add_u32 s{sStg}, s{sStg}, {L_STG}\n s_mov_b32 m0, s{sStg}")
        e(f"s_mov_b32 s{SRD_X+2}, {2048*1024*2}\n s_mov_b32 s{SRD_X+3}, 0x00020000\n s_mov_b32 s{SRD_QKV+2}, {1024*3072*2}\n s_mov_b32 s{SRD_QKV+3}, 0x00020000")
        e("s_waitcnt lgkmcnt(0)")
        e(f"s_mov_b32 s{SRD_X}, s48\n s_and_b32 s{SRD_X+1}, s49, 0xffff\n s_mov_b32 s{SRD_QKV}, s50\n s_and_b32 s{SRD_QKV+1}, s51, 0xffff")
        if not self.o.get("nohelp"):
            e.vm(f"buffer_load_dword v{vA+4}, v58, {srd(SRD_X)}, s{sOffX} offen offset:384")
            e.vm(f"buffer_load_dword v{vA+5}, v59, {srd(SRD_QKV)}, s{sOffW} offen offset:384")
        for i in range(4):
            e.vm(f"buffer_load_dwordx4 v62, {srd(SRD_X)}, s{sT0} offen" + (f" offset:{i*1024}" if i else "") + " lds", "res")
            if i < 3: e(f"s_add_u32 s{sT0}, s{sT0}, {8*2048 - 1024}")
        def share(n):
            e(f"s_add_u32 s{sT0}, s{sT1}, {(2048, 4096, 0)[n//2] + (n % 2)*8*6144}")
            e.vm(f"buffer_load_dwordx4 {vr(vB+4*n)}, v60, {srd(SRD_QKV)}, s{sT0} offen", "sh")
        for n in range(2): share(n)
        e(f"v_lshlrev_b32 v{vL16}, 4, v0")
        if not self.o.get("nocodepf"):
            e(f"s_getpc_b64 s[96:97]")
            e.label("Lpc")
            e(f"s_sub_u32 s96, s96, Lpc-{KNAME}\n s_subb_u32 s97, s97, 0\n s_and_b32 s97, s97, 0xffff\n s_mov_b32 s98, Lcodeend-{KNAME}\n s_mov_b32 s99, 0x00020000")
            e(f"s_lshr_b32 s{sT0}, s2, 3\n s_lshl_b32 s{sT0}, s{sT0}, 12\n s_lshl_b32 s3, s{sW}, 10\n s_add_u32 s{sT0}, s{sT0}, s3")
            e.vm(f"buffer_load_dwordx4 {vr(vA)}, v{vL16}, s[96:99], s{sT0} offen")
        for n in range(2, 6): share(n)
        for (d, p, n) in [(SRD_WO, 52, 1024*1024*2), (SRD_W1, 56, 1024*3584*2),
                          (SRD_W2, 58, 3584*1024*2), (SRD_OUT, 60, 2048*1024*2), (SRD_DBG, 62, 256), (SRD_WS, 64, WS_BYTES)]:
            e(f"s_mov_b32 s{d}, s{p}\n s_and_b32 s{d+1}, s{p+1}, 0xffff\n s_mov_b32 s{d+2}, {n}\n s_mov_b32 s{d+3}, 0x00020000")
        e(f"v_add_u32 v{vL16b}, 4096, v{vL16}")
        e(f"v_cmp_eq_u32 vcc, 0, v0\n v_mov_b32 v60, {OOB}\n v_cndmask_b32 v{vFlagOff}, v60, v0, vcc")
        if self.stamps:
            e(f"s_lshl_b32 s{sStamp}, s2, 2\n s_add_u32 s{sStamp}, s{sStamp}, s{sW}\n s_lshl_b32 s{sStamp}, s{sStamp}, 10\n s_add_u32 s{sStamp}, s{sStamp}, {WS_STAMP}")
            e("v_mov_b32 v63, v0")
            self.snames.append("start")
            e("v_mov_b32 v0, s92")
            e.vm(f"buffer_store_dword v0, v{vFlagOff}, {srd(SRD_WS)}, s{sStamp} offen")
            e("s_and_b32 s94, s94, 0xffffff\n v_mov_b32 v0, s94")
            e.vm(f"buffer_store_dword v0, v{vFlagOff}, {srd(SRD_WS)}, s{sStamp} offen offset:4")
            self.stamp("entry")
            e("v_mov_b32 v0, v63")
        e(f"s_lshl_b32 s{sLrow}, s{sTB}, 11\n s_lshl_b32 s{sT1}, s{sJ}, 7\n s_add_u32 s{sT0}, s{sLrow}, s{sT1}\n v_mov_b32 v61, 0\n v_and_b32 v62, 31, v0\n v_lshlrev_b32 v62, 2, v62")
        e.vm(f"buffer_store_dword v61, v62, {srd(SRD_WS)}, s{sT0} offen sc1", "pub")
        e(f"v_mov_b32 v{vFlagVal}, 1\n s_andn2_b32 s{sLkvS}, s{sT0}, 2048")
        e(f"s_add_u32 s{sT0}, s{sTB}, s{sW}\n s_sub_i32 s{sT0}, s{sT0}, 8\n s_max_i32 s{sT0}, s{sT0}, 0\n s_lshl_b32 s{sT0}, s{sT0}, 11\n s_add_u32 s{sLkvP}, s{sT0}, s{sT1}")
        e(f"s_and_b32 s3, s{sJ}, {self.o.get('j1', 1)}\n s_xor_b32 s3, s3, s{sG}\n s_and_b32 s3, s3, 1")
        for st in range(8): e(f"s_xor_b32 s{sRot8+st}, s3, {st}\n s_lshl_b32 s{sRot8+st}, s{sRot8+st}, 13")
        e(f"s_and_b32 s{sT0}, s{sJ}, {self.o.get('j4', 0)}\n s_xor_b32 s{sT0}, s{sT0}, s{sG}\n s_and_b32 s{sT0}, s{sT0}, {self.o.get('g4', 3)}")
        for st in range(4): e(f"s_xor_b32 s{sRot4+st}, s{sT0}, {st}\n s_lshl_b32 s{sRot4+st}, s{sRot4+st}, 13")
        e(f"s_lshl_b32 s{sT0}, s{sTB}, 16")
        for (d, r) in [(sXA, R_XA), (sXB, R_XB), (sO, R_O)]: e(f"s_add_u32 s{d}, s{sT0}, {R0 + r}")
        e(f"s_mul_i32 s{sH}, s{sTB}, 229376\n s_add_u32 s{sH}, s{sH}, {R0 + R_H}")
        e(f"s_lshl_b32 s{sT0}, s{sTB}, 12\n s_add_u32 s{sStA}, s{sT0}, {R0 + R_STA}\n s_add_u32 s{sStB}, s{sT0}, {R0 + R_STB}")
        e(f"s_lshl_b32 s{sT1}, s{sJ}, 19\n s_add_u32 s{sT1}, s{sT1}, {R0 + R_KV}")
        e(f"s_lshl_b32 s{sT0}, s{sTB}, 13\n s_add_u32 s{sKVown}, s{sT0}, s{sT1}")
        for b in range(2):
            e(f"s_add_u32 s{sT0}, s{sTB}, s{sW}\n s_sub_i32 s{sT0}, s{sT0}, {8-b}\n s_max_i32 s{sT0}, s{sT0}, 0\n s_lshl_b32 s{sT0}, s{sT0}, 13\n s_add_u32 s{sKVb+b}, s{sT0}, s{sT1}")
        e(f"s_lshl_b32 s{sLdsW2}, s{sW}, 13")
        e(f"s_mul_i32 s{sPf}, s{sG}, 14\n s_add_u32 s{sPf}, s{sPf}, s{sJ}\n s_cmp_gt_u32 s{sJ}, 3\n s_subb_u32 s{sPf}, s{sPf}, 0\n s_cmp_gt_u32 s{sJ}, 11\n s_subb_u32 s{sPf}, s{sPf}, 0")
        e(f"s_lshl_b32 s{sPf}, s{sPf}, 2\n s_add_u32 s{sPf}, s{sPf}, s{sW}\n s_lshl_b32 s{sPf}, s{sPf}, 10")
        e(f"s_lshr_b32 s{sT0}, s{sJ}, 2\n s_lshl_b32 s{sHs}, s{sT0}, 13\n s_lshl_b32 s{sT0}, s{sT0}, 19")
        for ch, x in enumerate(self.F2X):
            e(f"s_xor_b32 s{sT1}, s{sJ}, {4*x}\n s_lshl_b32 s{sT1}, s{sT1}, 7\n s_add_u32 s{sF+ch}, s{sT0}, s{sT1}")
        e(f"s_lshl_b32 s{sPar0}, s3, 18\n s_xor_b32 s{sPar1}, s{sPar0}, {1 << 18}")
        e(f"s_mul_i32 s{sP}, s{sTB}, {16*12288}\n s_add_u32 s{sP}, s{sP}, {R0 + R_P}")
        e(f"s_and_b32 s{sT0}, s{sG}, 3\n s_lshl_b32 s{sT0}, s{sT0}, 1\n s_bfe_u32 s{sT1}, s{sJ}, 0x10002\n s_add_u32 s{sOffX}, s{sT0}, s{sT1}")
        e(f"s_and_b32 s{sOffW}, s{sJ}, 3\n s_lshl_b32 s{sOffW}, s{sOffW}, 3\n s_lshl_b32 s{sHrow}, s{sOffX}, 7\n s_add_u32 s{sHrow}, s{sHrow}, s{sOffW}")
        e(f"s_and_b32 s{sT0}, s{sJ}, 7\n s_sub_i32 s{sHcol}, 3, s{sT0}\n s_lshl_b32 s{sHcol}, s{sHcol}, 7")
        e(f"s_lshr_b32 s{sT0}, s{sOffX}, 1\n s_lshl_b32 s{sT0}, s{sT0}, 10\n s_and_b32 s{sT1}, s{sOffX}, 1\n s_lshl_b32 s{sT1}, s{sT1}, 7")
        e(f"s_cmp_lt_u32 s{sOffX}, 6\n s_cselect_b32 s{sT1}, s{sT1}, 0\n s_cselect_b32 s{sOffX}, 8, 7\n s_add_u32 s{sT0}, s{sT0}, s{sT1}\n s_add_u32 s{sOffW}, s{sOffW}, s{sT0}")
        for ch, x in enumerate(self.F2X):
            e(f"s_and_b32 s{sT0}, s{sJ}, 8\n s_or_b32 s{sT0}, s{sT0}, {(3 ^ (4*x)) & 7}\n s_lshr_b32 s{sT1}, s{sT0}, 2\n s_lshl_b32 s{sT1}, s{sT1}, s{sOffX}")
            e(f"s_add_u32 s{sT1}, s{sT1}, s{sOffW}\n s_lshl_b32 s{sT1}, s{sT1}, 11\n s_xor_b32 s{sT0}, s{sT0}, {4*x}\n s_lshl_b32 s{sT0}, s{sT0}, 7\n s_add_u32 s{sHF+ch}, s{sT0}, s{sT1}")
        e(f"s_sub_i32 s{sNinv}, 8, s{sTB}\n s_max_i32 s{sNinv}, s{sNinv}, 0")
        e(f"s_lshl_b32 s{sVal}, -1, s{sNinv}\n s_mov_b32 s{sVal+1}, 0")
        e(f"s_mov_b32 s{sK}, {hex(f2u(-LOG2E))}")
        for (d, m) in [(sM1, 0x22222222), (sM2, 0x44444444), (sM3, 0x88888888)]: e(f"s_mov_b32 s{d}, {hex(m)}\n s_mov_b32 s{d+1}, {hex(m)}")
        e(f"v_add_u32 v{vKVa}, s{sLdsW}, v{vL16}\n v_add_u32 v{vKVb}, 49152, v{vKVa}")
        e(f"v_lshlrev_b32 v64, 4, v45\n v_add_u32 v{vCsT}, {L_CS}, v64\n v_lshlrev_b32 v65, 2, v44\n v_add_u32 v{vCsV}, {L_CS}, v65")
        e(f"s_lshl_b32 s{sT0}, s{sW}, 9\n s_add_u32 s{sT0}, s{sT0}, {L_SCR}\n v_add_u32 v{vStW}, s{sT0}, v65\n v_add_u32 v{vStR}, s{sT0}, v64")
        e(f"v_lshrrev_b32 v64, 2, v44\n v_cmp_eq_u32 vcc, v64, v45\n v_lshlrev_b32 v65, 4, v44\n v_mov_b32 v66, {OOB}\n v_cndmask_b32 v{vStatSt}, v66, v65, vcc")
        e(f"v_mov_b32 v{vProf}, 0")
        e(f"v_lshrrev_b32 v64, 2, v44\n v_lshl_add_u32 v64, v45, 2, v64")
        e(f"v_bfe_u32 v65, v64, 1, 2\n v_and_b32 v66, 3, v0\n v_lshlrev_b32 v66, 3, v66\n v_lshl_add_u32 v66, v64, 7, v66")
        for q in range(4):
            e(f"v_xor_b32 v67, {q}, v65\n v_lshl_add_u32 v{vRd+q}, v67, 5, v66\n v_add_u32 v{vRd+4+q}, 0x10000, v{vRd+q}")
        e(f"v_lshlrev_b32 v64, 1, v45\n v_and_b32 v65, 7, v0\n v_xor_b32 v65, v65, v64\n v_lshlrev_b32 v47, 4, v65")
        e(f"s_lshl_b32 s{sT1}, s{sJ}, 7\n v_add_u32 v66, s{sT1}, v47")
        e(f"s_lshl_b32 s{sT0}, s{sW}, 5\n v_add_u32 v67, s{sT0}, v46")
        e(f"v_mul_u32_u24 v68, 6144, v67\n v_add_u32 v{vBQ}, v68, v66\n v_mul_u32_u24 v68, 7168, v67\n v_add_u32 v{vB1}, v68, v66")
        e(f"v_lshl_add_u32 v{vB2}, v67, 11, v47")
        e(f"v_lshrrev_b32 v68, 5, v0\n v_lshlrev_b32 v68, 4, v68\n v_and_b32 v69, 3, v46\n s_lshl_b32 s{sT0}, s{sW}, 6\n v_add3_u32 v68, v68, v69, s{sT0}\n v_lshl_add_u32 v{vBO}, v68, 11, v66")
        e(f"s_mov_b32 s{sT0}, s3\n v_lshrrev_b32 v68, 2, v65\n v_xor_b32 v68, s{sT0}, v68\n v_lshl_add_u32 v68, v68, 7, v67\n v_mul_u32_u24 v68, 7168, v68")
        e(f"v_and_b32 v69, 3, v65\n v_lshlrev_b32 v69, 4, v69\n s_lshl_b32 s{sT1}, s{sJ}, 6\n s_add_u32 s{sT1}, s{sT1}, 6144\n v_add3_u32 v{vB1h}, v68, v69, s{sT1}")
        e(f"v_bfe_u32 v64, v0, 2, 1\n v_and_b32 v65, 1, v45\n v_cmp_eq_u32 vcc, v64, v65\n v_mov_b32 v66, 0x3f803f80")
        for k in range(4): e(f"v_cndmask_b32 v{vSel+k}, 0, v66, vcc")
    def peeled(self):
        e = self.e; sp = self.spread; o = self.o
        self.peel = True; self.ring_free_upto = 3
        XA = vT; RA = vQ + 8; SEL = vA + 16; SH = vB; SA = vA
        def xdma(p):
            it = [f"s_lshr_b32 s{sOffX}, s{sRot8+p}, 5", f"s_add_u32 s{sOffX}, s{sOffX}, s{sXcur}"]
            out = []
            for h in range(2):
                g = (it if h == 0 else [f"s_add_u32 s{sOffX}, s{sOffX}, 32768"]) + [f"s_add_u32 m0, s{sLdsW2}, {(p % 2)*32768 + h*4096}"]
                for i in range(4): g.append(("vm", f"buffer_load_dwordx4 v{XA+i}, {srd(SRD_X)}, s{sOffX} offen" + (f" offset:{i*1024}" if i else "") + " lds", ("X", p)))
                out.append(g)
            return out
        def xreads(p):
            it = [("wait", ("X", p))]
            for s in range(4):
                for tt in range(2):
                    for jj in range(2):
                        it.append(("ds", f"ds_read_b64 {ar((4*p+s)*8 + 4*tt + 2*jj, 2)}, v{RA + 2*s + jj} offset:{(p % 2)*32768 + tt*4096}", ("xr", p)))
            return it
        call = lambda fn, c=40: (lambda f: (setattr(f, "cost", c), f)[1])(lambda e_: fn())
        for i in range(4):
            e(f"v_add_u32 v64, {4*i}, v45\n v_xor_b32 v65, v44, v64\n v_lshlrev_b32 v65, 4, v65\n v_lshl_add_u32 v{XA+i}, v64, 11, v65")
            if i: e(f"v_subrev_u32 v{XA+i}, {1024*i}, v{XA+i}")
        e(f"v_lshrrev_b32 v64, 1, v45\n v_xor_b32 v64, v64, v44\n v_lshlrev_b32 v64, 4, v64\n v_and_b32 v65, 1, v45\n v_lshlrev_b32 v65, 3, v65\n v_lshl_add_u32 v65, v44, 8, v65\n v_add_u32 v65, s{sLdsW2}, v65")
        for k in range(8): e(f"v_xor_b32 v66, {32*k}, v64\n v_add_u32 v{RA+k}, v66, v65")
        e(f"v_lshlrev_b32 v64, 7, v44\n v_lshl_add_u32 v64, v45, 3, v64\n v_add_u32 v64, s{sStg}, v64")
        self.emit(self.ones_items() + self.stats_addr(sStA, 0))
        self.cs_selector(SEL)
        e.wait(vm="res")
        self.stamp("res")
        for kp in range(2):
            for tt in range(2):
                for jj in range(2): e.ds(f"ds_read_b64 {vr(vK+8*kp+4*tt+2*jj,2)}, v64 offset:{tt*2048 + kp*64 + jj*32}")
        e.wait(lg="all")
        self.emit(self.stats_mfma(0) + self.stats_mfma(1))
        for kp in range(2):
            for tt in range(2):
                for jj in range(2):
                    for k in range(2):
                        s_ = vK + 8*kp + 4*tt + 2*jj + k; d = vX + 8*(2*kp+jj) + 4*tt + 2*k
                        e(f"v_lshlrev_b32 v{d}, 16, v{s_}\n v_and_b32 v{d+1}, 0xffff0000, v{s_}")
        x0 = xdma(0); x1 = xdma(1)
        self.emit(self.helper("qkv", 2048) + [x0[0]])
        e.wait(vm="sh")
        self.stamp("sh")
        for n in range(6): e(f"v_mfma_f32_16x16x32_bf16 {vr(SA+4*(n//2))}, {vr(SEL)}, {vr(SH+4*n)}, {'0' if n % 2 == 0 else vr(SA+4*(n//2))}")
        self.emit([x0[1]] + self.dma_items(0))
        self.cs_write_partials(SA, 3, vB + 24)
        self.emit(x1 + xreads(0) + self.dma_items(1))
        steps = self.chunk_steps(vA) + self.qkv_steps[32:]
        for p in range(1, 8): steps[4*p-1] = dict(steps[4*p-1], lgtags=[("xr", p)])
        e.wait(vm=("W", 0), lg="all")
        e("s_barrier")
        self.cs_reduce_store(3, 0, vB, "pub")
        self.stats_store()
        self.pre_reads("pk", 0, steps)
        self.stamp("pk_start")
        def signal():
            skip = e.newlabel("skip")
            e(f"s_lshl_b32 s{sT0}, s{sG}, 4\n v_mov_b32 v0, 1\n s_cmp_lg_u32 s{sW}, 0\n s_cbranch_scc1 {skip}")
            e.raw(f"buffer_atomic_add v0, v{vFlagOff}, {srd(SRD_DBG)}, s{sT0} offen sc1")
            e.label(skip)
        fill = [[] for _ in range(32)]
        for p in range(7): sp(fill, xreads(p+1), 4*p, 4*p+2)
        xd = xdma(2); fill[0].append(xd[0]); fill[1].append(xd[1]); fill[2].append(self.dma_items(2))
        for p in range(5):
            xd = xdma(p+3)
            fill[4*p+3].append(xd[0]); fill[4*p+4].append(xd[1]); sp(fill, self.dma_items(p+3), 4*p+5, 4*p+7)
        steps[22] = dict(steps[22], lgtags=[("xr", 6)]); steps[26] = dict(steps[26], lgtags=[("xr", 7)])
        for (s, t) in [(8, 23), (9, 25), (10, 27)]: sp(fill, self.dma_items(s), t, t+2)
        fill[29].append(self.dma_items(11))
        sp(fill, self.dma_items(12)[:2], 30, 32)
        fill[2].append(self.helper("qkv", 4096)); fill[22].insert(0, self.helper("qkv", 0))
        fill[4].append(("wait", "pub")); fill[6].append(call(signal))
        tp = o.get("tp", 18)
        fill[tp] += [f"v_lshrrev_b32 v0, 6, v{vL16}", f"v_lshlrev_b32 v0, 4, v0", self.poll_load("dbg")]
        fill[tp+4] += [call(lambda: (e(f"v_lshrrev_b32 v0, 6, v{vL16}\n v_lshlrev_b32 v0, 4, v0"), self.poll_wait("dbg", 8), self.cs_gather_loads(3, 0, vB)))]
        fill[tp+5] += self.stats_load_items(sStA)
        fill[tp+10] += [call(lambda: (e.wait(vm="csg"), self.cs_gather_finish(3, 0, vB)))]
        steps[30] = dict(steps[30], lgtags=["csf"])
        fill[30] += self.cs_reads(0)
        for (d, mk, add) in [(sLh, 12, 128), (sLp, 3, 1024), (sLp1, 11, 512)]:
            fill[27].append([f"s_and_b32 s{d}, s{sJ}, {mk}", f"s_lshl_b32 s{d}, s{d}, 7", f"s_add_u32 s{d}, s{d}, s{sLrow}", f"s_add_u32 s{d}, s{d}, {add}"])
        fill[26].append([f"s_lshl_b32 s{sLcol}, s{sW}, 4", f"s_add_u32 s{sLcol}, s{sLcol}, s{sJ}", f"s_lshl_b32 s{sLcol}, s{sLcol}, 7"])
        fill[28] += [f"s_mov_b32 s{SRD_X+k}, s{SRD_W2+k}" for k in range(2)]
        fill[28] += [[f"s_and_b32 s{sT0}, s{sJ}, 7", f"s_cmp_eq_u32 s{sT0}, 3", f"s_cselect_b32 s{SRD_X+2}, 0, s{SRD_W2+2}"]]
        self.fstamp(fill, 8, "pk_8"); self.fstamp(fill, 16, "pk_16"); self.fstamp(fill, 24, "pk_24")
        self.run("pk", 0, steps, fill, t_end=32)
        e.wait(vm="stats", lg="cs")
        e("s_branch Ljoin")
        self.peel = False
        e.vm_done = e.vm_n; e.lg_done = e.lg_n; self.ring_free_upto = 7
        for s in range(8): e.vm_n += 1; e.vm_tag[("W", s)] = e.vm_n + 7 - s
        n0 = len(e.ins); self.pre_reads("qkv", 0, self.qkv_steps); del e.ins[n0:]
    def layer(self):
        e = self.e; sp = self.spread; o = self.o
        cat = lambda xs: sum(xs, [])
        e.label("Llayer")
        self.stamp("Lstart")
        steps = self.qkv_steps
        fill = [[] for _ in steps]
        tabs = [(sRot8+st, sXA) for st in range(8)]
        for st in range(2): self.emit(self.xload_items(tabs[st][0], tabs[st][1], 4*st, "xa"))
        self.x_sched(fill, "xa", tabs, 2, 8, 0)
        fill[26].append(self.helper("qkv", 0)); fill[55].append(self.helper("wo", 0))
        for (t, pcs) in o.get("sht", [(33, [0, 1, 2])]):
            if pcs: fill[t].append(self.w1_share_dma(pcs))
        self.w_schedule_head(fill, 0, 23)
        sp(fill, self.stats_load_items(sStA), 22, 26)
        sp(fill, self.flag_items(1, "kst"), 60, 61)
        sp(fill, [self.poll_load(1)], 68, 69)
        sp(fill, [self.poll_check(1)], 77, 78)
        sp(fill, self.kv_dma_items(0), 78, 86)
        sp(fill, self.kv_own_writes(0), 87, 91)
        sp(fill, self.flag_items(2, "vst"), 87, 88)
        sp(fill, [self.poll_load(2)], 94, 95)
        sp(fill, self.cs_reads(0), 28, 30)
        sp(fill, self.vstat_reads() + self.csv_reads(), 55, 60)
        sp(fill, self.cs_reads(2), 91, 93)
        self.pour(fill, self.stats_items("qkv") + [self.at_least(32)] + self.kq_epilogue(vA, vK, vC1, self.kv_stores(vK, vL16, "kst")), 32, 53)
        self.pour(fill, self.v_epilogue(vB, self.kv_stores(vV, vL16b, "vst")), 62, 79)
        qe = self.kq_epilogue(vA, vQ, vSum)
        self.pour(fill, self.mask_items() + [f"v_mul_f32 v{vSum+tt}, {hex(f2u(LOG2E/math.sqrt(32.0)))}, v{vC1+tt}" for tt in range(2)], 79, 95)
        fill[95] += qe[:21]
        for (t, n) in [(1, "k_first"), (32, "k_end"), (64, "v_end")]: self.fstamp(fill, t, n)
        self.run("qkv", 0, steps, fill, labels={32: "Ljoin"})
        self.stamp("qkv_end")
        e.wait(vm=("kvd", 0), lg="all")
        e("s_barrier")
        side = cat(self.kv_reads(0, 0, b) for b in range(6))
        for k, it in enumerate(qe[21:45]):
            if k % 2 == 0: e.item(side.pop(0))
            e.item(it)
        self.stamp("attn_start")
        s1 = [[] for _ in range(18)]; s2 = [[] for _ in range(18)]
        bar = lambda vm: [[("wait", vm, "all"), "s_barrier"]]
        steps = self.chunk_steps(vX, xtag="xo", inplace=True, std=(0, 4))
        tabs = [(sRot4 + st % 4, sO if st < 4 else sXcur) for st in range(8)]
        s1[0].append(lambda e_: self.poll_wait(2))
        sp(s1, self.kv_dma_items(1), 0, 5)
        sp(s1, cat(self.kv_reads(0, 0, b) for b in (6, 7)) + self.kv_own_writes(1) + cat(self.kv_reads(0, 1, b) for b in range(4)), 1, 9)
        sp(s1, qe[45:], 0, 8)
        sp(s1, self.dma_items(30, True, True), 5, 9)
        s2[0] += bar(("kvd", 1)) + [f"s_add_u32 s{sXcur}, s{sO}, 32768"]
        sp(s2, cat(self.kv_reads(1, 0, b) for b in range(8)) + cat(self.kv_reads(0, 1, b) for b in range(4, 8)) + cat(self.kv_reads(1, 1, b) for b in range(8)), 0, 8)
        sp(s2, self.dma_items(31, False, True), 1, 3)
        s2[2].append(self.w1_share_dma(o.get("sha", [3, 4, 5, 6])))
        s1[9] += bar(None)
        sp(s1, cat(self.dma_items(s, None, True) for s in (24, 25)), 10, 18)
        fs, ps, cs_ = o.get("t1", (10, 14, 16))
        s2[fs] += self.flag_items(3, ("o", 0))
        sp(s2, cat(self.dma_items(s, None, True) for s in (26, 27, 28, 29)), 9, 15)
        s2[9] += [self.helper("w1", 0)]; s2[12] += [self.helper("w1", 2048)]
        s2[ps] += [self.poll_load(3)]
        s2[cs_].append(lambda e_: self.poll_wait(3))
        xl = self.xload_items(tabs[0][0], tabs[0][1], 0, "xo") + self.xload_items(tabs[1][0], tabs[1][1], 4, "xo")
        k = 4*(18 - cs_) - 1
        sp(s2, xl[:k], cs_, 18)
        self.attention(s1, s2, xl[k:k+3])
        self.stamp("attn_end")
        self.ring_free_upto = 31
        fill = [[] for _ in steps]
        e("s_barrier")
        self.pre_reads("wo", 24, steps)
        self.emit(xl[k+3:])
        e.item(self.cs_produce())
        f4 = o.get("f4", 1)
        fill[f4] += self.flag_items(4, ("o", 1))
        self.stamp("wo_start")
        self.x_sched(fill, "xo", tabs, 2, 4, 0)
        pw = o.get("pw", 7)
        sp(fill, [self.poll_load(4)], pw, pw+1)
        sp(fill, [self.poll_check(4)], pw+4, pw+5)
        sp(fill, cat(self.xload_items(tabs[st][0], tabs[st][1], 4*st, "xo") for st in (4, 5)), pw+4, 16)
        self.x_sched(fill, "xo", tabs, 6, 8, 16)
        fill[7] += [self.cs_produce_b()]
        sp(fill, self.flag_items(5, ("xo", 16)), 17, 18)
        ca, cb, cc = self.cs_consume_pieces(5, 4, 3, vB)
        fill[28].append(ca)
        nw = o.get("nw", 4)
        sp(fill, cat(self.dma_items(s) for s in range(32, 32+nw)), 24, 24 + 2*nw - (nw == 4))
        fill[17] += self.ones_items()
        fill[29] += self.pub_addr(sXB, 0) + self.stats_addr(sStB, 0)
        pk = self.pack_items(0); st = self.xstore_items(0)
        fill[30] += pk[:4] + [st[0]]; fill[31] += pk[4:] + [st[1]] + self.stats_mfma(0)
        self.fstamp(fill, 16, "wo_half")
        self.run("wo", 24, steps, fill)
        self.stamp("wo_end")
        self.publish_tail()
        steps = self.chunk_steps(vA, xtag="xb", std=(0,)) + self.chunk_steps(vB) + self.chunk_steps(vA) + self.half_steps(vQ)
        for (ch, ks) in self.F2U:
            steps += self.stage_steps([vB, vA, vB, vX][ch], ks, ks == 0 and ch < 3, ("h", 4*ks+3) if ch == 0 else None)
        e.wait(vm=("W", 33), lg="all")
        e("s_barrier"); self.ring_free_upto = 39
        n1 = o.get("n1", 2)
        e.item(cb)
        for s in range(32+nw, 32+nw+n1): self.emit(self.dma_items(s))
        self.pre_reads("ffn", 32, steps)
        self.emit(self.flag_items(6, "pub", True))
        self.stamp("t2_flag")
        e.item(cc)
        for s in range(32+nw+n1, 40): self.emit(self.dma_items(s))
        self.poll_wait(6, own=1)
        self.stamp("ffn_start")
        fill = [[] for _ in steps]
        tabs = [(sRot8+st, sXB) for st in range(8)]
        for st in range(2): self.emit(self.xload_items(tabs[st][0], tabs[st][1], 4*st, "xb"))
        self.x_sched(fill, "xb", tabs, 2, 8, 0)
        for r, t in enumerate(o.get("pft", [30, 30, 38, 46, 54, 54, 72, 72])): fill[t].append(self.prefetch(r))
        for (t, kind, arg) in o.get("hlp", [(26, "w1", 4096), (55, "half", 0), (80, "f", 0), (83, "f", 1), (127, "f", 2), (147, "f", 3), (177, "qkv", 2048), (187, "qkv", 4096)]):
            fill[t].append(self.helper(kind, arg))
        nw3 = o.get("nw3", 4)
        self.w_schedule_head(fill, 32, 87 + nw3)
        fill[0].append([f"s_cmp_eq_u32 s{sLayer}, 0", f"s_cselect_b32 s{SRD_QKV+2}, {1024*3072*2}, 0"])
        sp(fill, self.stats_load_items(sStB), 22, 26)
        def hload(ks):
            if ks < 6: ad = [f"s_lshr_b32 s{sOffX}, s{sPar1 if ks & 1 else sPar0}, 5", f"s_add_u32 s{sOffX}, s{sOffX}, s{sXcur}"] + ([f"s_add_u32 s{sOffX}, s{sOffX}, {(ks//2)*65536}"] if ks >= 2 else [])
            else: ad = [f"s_add_u32 s{sOffX}, s{sH}, s{sHs}", f"s_add_u32 s{sOffX}, s{sOffX}, {3*65536}"]
            return self.xload_items(None, ad, 4*ks, "h")
        fill[93].append([f"s_lshl_b32 s{sXcur}, s{sHs}, 1", f"s_add_u32 s{sXcur}, s{sXcur}, s{sH}"])
        def hoff(c):
            if c < 3: return [f"s_lshl_b32 s{sT1}, s{sJ}, 12", f"s_add_u32 s{sT1}, s{sT1}, s{sH}"] + ([f"s_add_u32 s{sT1}, s{sT1}, {c*65536}"] if c else [])
            return [f"s_lshl_b32 s{sT1}, s{sJ}, 11", f"s_add_u32 s{sT1}, s{sT1}, s{sH}", f"s_add_u32 s{sT1}, s{sT1}, {3*65536}"]
        def handoff(kind, val, tag, tf, tc):
            sp(fill, self.flag_items(val, tag), tf, tf+1)
            sp(fill, [self.poll_load(val)], tc-6, tc-5)
            sp(fill, [self.poll_check(val)], tc, tc+1)
        handoff("h", 7, ("hs", 0), 70, 99);  sp(fill, hload(0) + hload(1), 100, 110)
        handoff("h", 8, ("hs", 1), 99, 114); sp(fill, hload(2) + hload(3), 114, 126)
        handoff("h", 9, ("hs", 2), 119, 133); sp(fill, hload(4) + hload(5), 133, 142)
        handoff("h", 10, ("hs", 3), 133, 149); sp(fill, hload(6), 149, 155)
        handoff("p", 11, ("ps", 1), 181, 198); sp(fill, self.partial_loads(0) + self.partial_loads(1), 198, 203)
        handoff("p1", 12, ("ps", 2), 203, 216); sp(fill, self.partial_loads(2), 216, 218)
        for (tile, t) in [(3, 28), (4, 63), (5, 94), (6, 112)]: sp(fill, self.cs_reads(tile), t, t+1)
        sp(fill, self.partial_items(vB, 0, 0), 162, 164); sp(fill, self.partial_items(vB, 0, 1), 164, 167)
        sp(fill, self.partial_items(vA, 1, 0) + self.partial_items(vA, 1, 1), 168, 175)
        sp(fill, self.partial_items(vB, 2, 0), 194, 196); sp(fill, self.partial_items(vB, 2, 1), 196, 198)
        sp(fill, self.ident_items() + self.ones_items(), 183, 192)
        sp(fill, self.partial_adds(0) + self.partial_adds(1), 207, 216)
        self.pour(fill, self.stats_items("ffn") + [self.at_least(32)] + self.silu_epilogue(vA, 4, hoff(0), ("hs", 0)), 30, 63)
        self.pour(fill, self.silu_epilogue(vB, 4, hoff(1), ("hs", 1)), 65, 93)
        self.pour(fill, self.silu_epilogue(vA, 4, hoff(2), ("hs", 2)), 96, 112)
        self.pour(fill, self.silu_epilogue(vQ, 2, hoff(3), ("hs", 3)), 114, 127)
        fill[219] += self.pub_addr(sXA, LAYER) + self.stats_addr(sStA, LAYER)
        pa = self.partial_adds(2)
        fill[223] += pa[:7]
        for (t, n) in [(1, "c0_first"), (32, "c0_end"), (64, "c1_end"), (96, "c2_end"), (112, "half_end"), (140, "f2_28"), (168, "f2_56"), (196, "f2_84")]:
            self.fstamp(fill, t, n)
        self.run("ffn", 32, steps, fill)
        self.emit(pa[7:] + self.pack_items(0))
        self.stamp("ffn2_end")
        if any(k.startswith("prof_") for k in o):
            e(f"s_lshl_b32 s{sT0}, s2, 2\n s_add_u32 s{sT0}, s{sT0}, s{sW}\n s_lshl_b32 s{sT0}, s{sT0}, 1\n s_add_u32 s{sT0}, s{sT0}, s{sLayer}\n s_lshl_b32 s{sT0}, s{sT0}, 8")
            e(f"s_add_u32 s{sT0}, s{sT0}, {WS_STAMP + 0x400000}\n v_lshrrev_b32 v0, 2, v{vL16}")
            e.vm(f"buffer_store_dword v{vProf}, v0, {srd(SRD_WS)}, s{sT0} offen")
        e(f"s_cmp_lg_u32 s{sLayer}, 0\n s_cbranch_scc1 Lfinal")
        self.emit(self.xstore_items(0) + self.stats_mfma(0))
        self.publish_tail()
        e.wait(vm=("W", 89))
        e("s_barrier"); self.ring_free_upto = 95
        for s in range(88+nw3, 88+nw3+n1): self.emit(self.dma_items(s))
        self.pre_reads("qkv2", 0, self.qkv_steps)
        self.emit(self.flag_items(13, "pub", True))
        self.stamp("t3_flag")
        for s in range(88+nw3+n1, 96): self.emit(self.dma_items(s))
        for s in [sXA, sXB, sO, sH, sKVown, sStA, sStB, sP, sKVb, sKVb+1]: e(f"s_add_u32 s{s}, s{s}, {LAYER}")
        for s in [sLkvS, sLkvP, sLh, sLp, sLp1, sLcol]: e(f"s_add_u32 s{s}, s{s}, 64")
        self.poll_wait(13, own=1)
        self.stamp("trans_end")
        if self.stamps: e(f"s_add_u32 s{sStamp}, s{sStamp}, 512"); e.wait(vm="all")
        e(f"s_mov_b32 s{sLayer}, 1\n s_add_u32 s{sLrow}, s{sLrow}, 64\n s_mov_b32 s{SRD_X+2}, 0\n s_branch Llayer")
        e.label("Lfinal")
        e("s_nop 7")
        self.emit(self.pack_items(1))
        e(f"v_lshrrev_b32 v48, 4, v{vL16}\n v_and_b32 v49, 15, v48\n v_lshlrev_b32 v49, 11, v49\n v_bfe_u32 v50, v48, 4, 1\n v_lshl_add_u32 v49, v50, 5, v49")
        e(f"v_lshrrev_b32 v50, 5, v48\n v_lshl_add_u32 v49, v50, 4, v49")
        e(f"s_lshl_b32 s{sT0}, s{sTB}, 16\n s_lshl_b32 s{sT1}, s{sJ}, 7\n s_add_u32 s{sT0}, s{sT0}, s{sT1}\n s_add_u32 s{sT1}, s{sT0}, 32768")
        for kp in range(2):
            for tt in range(2):
                p = vK + 8*kp + 4*tt
                for k in range(2): e(f"v_permlane16_swap_b32 v{p+k}, v{p+2+k}")
                e.vm(f"buffer_store_dwordx4 {vr(p)}, v49, {srd(SRD_OUT)}, s{sT1 if tt else sT0} offen" + (" offset:64" if kp else ""))
        self.stamp("trans_end")
        e.label("Lend")
        e("s_endpgm")
    def build(self):
        self.qkv_steps = self.chunk_steps(vA, xtag="xa", std=(0,)) + self.chunk_steps(vB, swap=True) + self.chunk_steps(vA)
        self.setup()
        self.peeled()
        self.layer()
        body = self.e.finish()
        hdr = open("cdna_kernels/" + KNAME[:-7] + ".s.ref").read().split("; Override launch")[0] if False else ""
        out = [f"; stamps: {' '.join(self.snames)}"] if self.stamps else []
        if any(k.startswith("prof_") for k in self.o): out = ["; prof " + str(self.o)]
        out += [f"; @launch grid=(256,1,1) block=(256,1,1) lds={LDS_BYTES}",
               "; Generated by a hand-written generator script: persistent fused kernel, one workgroup per CU.",
               '.amdgcn_target "amdgcn-amd-amdhsa--gfx950"', ".text", f".globl {KNAME}", ".p2align 8", f".type {KNAME},@function", f"{KNAME}:"]
        out += body + ["Lcodeend:"]
        out += ['.section .rodata,"a"', ".p2align 6", f".amdhsa_kernel {KNAME}", "  .amdhsa_next_free_vgpr 512", "  .amdhsa_next_free_sgpr 102",
                "  .amdhsa_accum_offset 256", "  .amdhsa_group_segment_fixed_size 0", "  .amdhsa_kernarg_size 72", "  .amdhsa_user_sgpr_count 2",
                "  .amdhsa_user_sgpr_kernarg_segment_ptr 1", "  .amdhsa_system_sgpr_workgroup_id_x 1", ".end_amdhsa_kernel"]
        return "\n".join(out) + "\n"

if __name__ == "__main__":
    path = sys.argv[1]
    stamps = "stamps" in sys.argv[2:]
    opts = {}
    for a in sys.argv[2:]:
        if "=" in a:
            k, v = a.split("="); opts[k] = eval(v)
    g = Gen(stamps, opts)
    txt = g.build()
    open(path, "w").write(txt)
    print("lines", txt.count("\n"), "bytes", len(txt), "nops", g.e.nnops, "vm_max", g.e.vm_max)
```

```python
import sys, math, struct
from emit import E

KNAME = "interleave_layers__sliding_block__dense_activation_silu__prompt_kernel"
def f2u(x): return struct.unpack("<I", struct.pack("<f", x))[0]
LOG2E = 1.4426950408889634

WS_FLAGS = 0
WS_CSP = 0x20000
WS_STAMP = 0xF000000
R0 = 0x100000; LAYER = 0x4000000
R_STA = 0x0; R_STB = 0x40000; R_XA = 0x100000; R_XB = 0x500000; R_O = 0x900000; R_KV = 0xD00000; R_H = 0x1500000; R_P = 0x2300000
WS_BYTES = 268435456
OOB = 0x40000000
L_CS = 131072; L_SCR = 133120; L_STG = 135168; STGW = 7168; LDS_BYTES = 163840
SRD_WS, SRD_QKV, SRD_WO, SRD_W1, SRD_W2, SRD_X, SRD_OUT, SRD_DBG = 4, 8, 12, 16, 20, 24, 28, 32
sW, sG, sJ, sTB, sLayer, sLdsW, sOffW, sOffX, sFl, sT0, sT1, sSpin = 36, 37, 38, 39, 40, 41, 42, 43, 44, 45, 46, 47
sRot8 = 48
sRot4 = 56
sKVb = 60
sLdsW2, sPf = 62, 63
sHF = 64
sHrow, sHcol = 0, 1
sXA, sXB, sO, sH, sKVown, sStA, sStB = 68, 69, 70, 71, 72, 73, 74
sLkvS, sLrow, sNinv, sK = 75, 76, 77, 78
sLkvP = sFl
sLh, sLp, sLp1, sLcol = 32, 33, 34, 35
sXcur = 79
sVal = 96
sM1, sM2, sM3 = 80, 82, 84
sStg = 87
sF = 88
sPar0, sPar1, sHs, sP = 92, 93, 94, 95
sStamp = 86
vL16, vL16b, vPollX, vPollKV, vCsT, vCsV, vStW, vStR, vStatSt, vProf, vFlagOff = 1, 2, 3, 4, 5, 6, 7, 8, 9, 10, 11
vRd = 12
vBQ, vBO, vB1, vB1h, vB2 = 20, 21, 22, 23, 24
vPoll, vFlagVal, vM = 25, 26, 27
vD = 28
vKVa, vPollH, vPollP, vKVb = 32, 33, 34, 35
vSel = 36
vC1, vC2 = 40, 42
vSum = 44
vT = 48
vOnes = vT + 8
vW = 64
vA, vB, vX = 112, 144, 176
vK, vV, vQ = 208, 224, 240

def vr(b, n=4): return f"v[{b}:{b+n-1}]"
def ar(b, n=4): return f"a[{b}:{b+n-1}]"
def srd(b): return f"s[{b}:{b+3}]"

class Gen:
    def __init__(self, stamps=False, opts=None):
        self.e = E(); self.stamps = stamps; self.snames = []
        self.o = dict(D=16)
        if opts: self.o.update(opts)
        self.peel = False
        self.ring_free_upto = -1
    def stamp(self, name):
        if self.stamps:
            if name not in self.snames: self.snames.append(name)
            idx = self.snames.index(name); assert idx < 64
            e = self.e
            e("s_memtime s[98:99]\n s_memrealtime s[100:101]\n s_waitcnt lgkmcnt(0)")
            e.lg_done = e.lg_n
            e("v_mov_b32 v0, s98")
            e.vm(f"buffer_store_dword v0, v{vFlagOff}, {srd(SRD_WS)}, s{sStamp} offen offset:{8*idx}")
            e(f"s_lshl_b32 s99, s{sSpin}, 24\n s_and_b32 s100, s100, 0xffffff\n s_or_b32 s100, s100, s99\n v_mov_b32 v0, s100")
            e.vm(f"buffer_store_dword v0, v{vFlagOff}, {srd(SRD_WS)}, s{sStamp} offen offset:{8*idx+4}")
    def fstamp(self, fill, t, name):
        if self.stamps: fill[t].insert(0, lambda e_: self.stamp(name))
    EV = {1: (sLkvS, sLkvP, 2), 2: (sLkvS, sLkvP, 2), 3: (sLrow, sLrow, 16), 4: (sLrow, sLrow, 16), 5: (sLcol, sLcol, 16), 6: (sLrow, sLrow, 16),
          7: (sLh, sLh, 4), 8: (sLh, sLh, 4), 9: (sLh, sLh, 4), 10: (sLh, sLh, 4), 11: (sLp, sLp, 4), 12: (sLp1, sLp1, 2), 13: (sLrow, sLrow, 16)}
    def flag_items(self, ev, after, ret=False):
        if ret: return [f"v_mov_b32 v{vPoll}, 1", ("wait", after), ("vm", f"buffer_atomic_add v{vPoll}, v{vFlagOff}, {srd(SRD_WS)}, s{self.EV[ev][0]} offen offset:{4*ev} sc0 sc1", "poll")]
        return [("wait", after), ("vm", f"buffer_atomic_add v{vFlagVal}, v{vFlagOff}, {srd(SRD_WS)}, s{self.EV[ev][0]} offen offset:{4*ev} sc1")]
    def poll_load(self, ev, tag="poll"):
        if ev == "dbg": return [("vm", f"buffer_load_dword v{vPoll}, v0, {srd(SRD_DBG)}, 0 offen sc1", tag)]
        return [f"v_mov_b32 v{vPoll}, 0", ("vm", f"buffer_atomic_add v{vPoll}, v{vFlagOff}, {srd(SRD_WS)}, s{self.EV[ev][1]} offen offset:{4*ev} sc0 sc1", tag)]
    def poll_test(self, ev, label, fail, own=0):
        if ev == "dbg": return [f"v_cmp_gt_u32 vcc, 16, v{vPoll}", f"s_cbranch_{'vccnz' if fail else 'vccz'} {label}"]
        return [f"v_readfirstlane_b32 s{sT0}, v{vPoll}", f"s_cmp_lt_u32 s{sT0}, {self.EV[ev][2] - own}", f"s_cbranch_{'scc1' if fail else 'scc0'} {label}"]
    def spin(self, ev, lp, sleep):
        it = [f"s_sleep {sleep}"] if sleep else []
        it += [x if isinstance(x, str) else x[1] for x in self.poll_load(ev)]
        it += [f"s_add_u32 s{sSpin}, s{sSpin}, 1", f"s_cmp_ge_u32 s{sSpin}, 0x40000", "s_cbranch_scc1 Lend", "s_waitcnt vmcnt(0)"]
        return it + self.poll_test(ev, lp, True)
    def poll_check(self, ev):
        def f(e):
            slow = e.newlabel("slow"); back = e.newlabel("back")
            e.wait(vm="poll")
            for x in self.poll_test(ev, slow, True): e(x)
            e.label(back)
            e.tail += [slow + ":"] + self.spin(ev, slow, 0) + [f"s_branch {back}"]
        f.cost = 16
        return f
    def poll_wait(self, ev, sleep=0, own=0):
        e = self.e
        lp = e.newlabel("pw"); ok = e.newlabel("pok")
        e.wait(vm="poll")
        for x in self.poll_test(ev, ok, False, own): e(x)
        e.raw("; opt-begin")
        e.label(lp)
        for x in self.spin(ev, lp, sleep): e.raw(x)
        e.raw("; opt-end")
        e.label(ok)
    def stage_desc(self, s):
        if s < 24:
            c = s // 8; col = [2048, 4096, 0][c]
            return SRD_QKV, vBQ, 8*6144 - 1024, col, sRot8 + s % 8, 96, s % 8 == 0
        if s < 32:
            h = (s - 24) // 4
            return SRD_WO, vBO, 4*2048 - 1024, h*32*2048, sRot4 + s % 4, 64, s % 4 == 0
        if s < 56:
            c = (s - 32) // 8
            return SRD_W1, vB1, 8*7168 - 1024, 2048*c, sRot8 + s % 8, 112, s % 8 == 0
        if s < 60: return SRD_W1, vB1h, 8*7168 - 1024, 0, "lit", (s - 56)*256*7168, s == 56
        return SRD_W2, vB2, 8*2048 - 1024, 0, None, None, s == 60
    F2U = [(c, k+d) for k in (0, 2, 4) for c in (0, 1) for d in (0, 1)] + [(0, 6), (1, 6)] + [(2, k) for k in range(7)] + [(3, k) for k in range(7)]
    F2X = (2, 3, 1, 0)
    def dma_items(self, s, force_first=None, nochk=False):
        sr, base, step, const, tab, mul, first = self.stage_desc(s % 88)
        if force_first is not None: first = force_first
        if self.o.get("whit"): sr, base, step, const, mul, tab = SRD_WO, vB2, 8*2048 - 1024, 0, 32, sRot8 + s % 8
        it = []
        if first:
            for i in range(4):
                k = const + i*step
                it.append(f"v_add_u32 v{vD+i}, {k}, v{base}" if k else f"v_mov_b32 v{vD+i}, v{base}")
        def chk(e, s=s):
            assert nochk or s <= self.ring_free_upto, (s, self.ring_free_upto)
        if tab == "lit":
            it.append([chk, f"s_mov_b32 s{sOffW}, {mul}"])
        elif tab is not None:
            it.append([chk, f"s_mul_i32 s{sOffW}, s{tab}, {mul}"])
        else:
            ch, ks = self.F2U[s - 60]
            if ks < 6:
                it.append([chk, f"s_add_u32 s{sOffW}, s{sF+ch}, s{sPar1 if ks & 1 else sPar0}"])
                if ks >= 2: it.append(f"s_add_u32 s{sOffW}, s{sOffW}, {(ks//2)*1024*2048}")
            else:
                it.append([chk, f"s_lshl_b32 s{sOffW}, s{sHs}, 5"])
                it.append(f"s_sub_u32 s{sOffW}, s{sF+ch}, s{sOffW}")
                it.append(f"s_add_u32 s{sOffW}, s{sOffW}, {3072*2048}")
        it.append(f"s_add_u32 m0, s{sLdsW}, {self.slot(s)*16384}")
        for i in range(4):
            off = f" offset:{i*1024}" if i else ""
            if self.o.get("nodma") and i < 3 and s % 88 >= 8: continue
            it.append(("vm", f"buffer_load_dwordx4 v{vD+i}, {srd(sr)}, s{sOffW} offen{off} lds", ("W", s)))
        return [it[:-3]] + it[-3:]
    def xload_items(self, tab, base, pos0, tagname):
        if self.o.get("xhit"): base = sXA; tab = sRot8 + (pos0//4) % 8
        it = [f"s_add_u32 s{sOffX}, s{tab}, s{base}"] if tab is not None else list(base)
        for n in range(8):
            p = pos0 + n // 2; reg = (p % 32)*8 + (n % 2)*4
            off = f" offset:{(n % 4)*1024}" if n % 4 else ""
            it.append(("vm", f"buffer_load_dwordx4 {ar(reg)}, v{vL16 if n < 4 else vL16b}, {srd(SRD_WS)}, s{sOffX} offen{off} sc1", (tagname, p)))
        return [it[:-7]] + it[-7:]
    def slot(self, stage):
        return 4 + stage % 4 if self.peel and stage < 8 else stage % 8
    def frag_reads(self, stage, frs, buf, tag):
        it = []
        slot = self.slot(stage)
        for n, (s, q) in enumerate(frs):
            for jj in range(2):
                off = (slot % 4)*16384 + s*4096 + jj*2048
                d = vW + buf*16 + n*4 + jj*2
                it.append(("ds", f"ds_read_b64_tr_b16 {vr(d,2)}, v{vRd + (slot//4)*4 + q} offset:{off}", tag))
        return it
    @staticmethod
    def cost(it):
        if isinstance(it, str):
            return 16 if it.startswith("v_mfma") else 8 if it.startswith(("v_exp", "v_rcp", "v_rsq")) else 4
        if callable(it): return getattr(it, "cost", 0)
        if isinstance(it, list): return sum(Gen.cost(x) for x in it)
        if it[0] == "vm": return 32 if "store_dwordx4" in it[1] else 8
        return 4
    def pre_reads(self, name, stage0, steps):
        for t in range(2):
            for it in self.frag_reads(stage0, steps[t]["fr"], t % 3, (name, t)): self.e.item(it)
    @staticmethod
    def flat(items):
        out = []
        for it in items:
            if isinstance(it, list): out += Gen.flat(it)
            else: out.append(it)
        return out
    @staticmethod
    def kind(it):
        if isinstance(it, str):
            if it.startswith("s_"): return "s"
            if it.startswith(("v_exp", "v_rcp", "v_rsq")): return "t"
            return "m" if it.startswith("v_mfma") else "v"
        if callable(it): return "c" if getattr(it, "cost", 0) else "z"
        return "s" if it[0] == "wait" else "d"
    def run(self, name, stage0, steps, fill, t_end=None, labels={}):
        e = self.e; n = len(steps)
        def head(t):
            st = steps[t]; nt = t + 2; waits_vm = []; bar = False
            if st.get("xtag") is not None: waits_vm.append(st["xtag"])
            lg = [(name, t)] + st.get("lgtags", [])
            if self.peel and nt % 4 == 0 and nt < 32:
                e.wait(vm=("W", nt//4), lg=lg); e("s_barrier")
                self.ring_free_upto = {6: 9, 7: 11}.get(nt//4, min(7, nt//4 + 2))
                return
            if nt < n and nt % 8 == 0:
                waits_vm.append(("W", stage0 + nt//4 + 1)); bar = True
            e.wait(vm=waits_vm if waits_vm else None, lg=lg)
            if bar:
                if not self.o.get("nobar"): e("s_barrier")
                self.ring_free_upto = max(self.ring_free_upto, stage0 + nt//4 + 5)
        head(0)
        for t, st in enumerate(steps[:t_end]):
            nt = t + 2; self.cur_step = t
            if t in labels: e.label(labels[t])
            reads = self.frag_reads(stage0 + nt//4, steps[nt]["fr"], nt % 3, (name, nt)) if nt < n else []
            fl = self.flat(fill[t])
            P = self.o.get("prof_" + name)
            if P:
                t0 = self.o.get("prof0", 0)
                if t > t0 and (t-t0-1) % P == 0 and (t-t0-1)//P < 64: fl.insert(0, f"v_writelane_b32 v{vProf}, s100, {(t-t0-1)//P}")
                if t >= t0 and (t-t0) % P == 0 and (t-t0)//P < 64: fl.insert(0, "s_memtime s[100:101]")
            rem = sum(self.cost(x) for x in fl if self.kind(x) != "s"); fi = 0
            for m, (acc, fr, x, first) in enumerate(st["mm"]):
                w = vr(vW + (t % 3)*16 + fr*4); xx = ar(x); a = vr(acc)
                a_, b_ = (xx, w) if st.get("swap") else (w, xx)
                if m == 7:
                    while any(self.kind(y) in "dc" for y in fl[fi:]): e.item(fl[fi]); fi += 1
                e(f"v_mfma_f32_16x16x32_bf16 {a}, {a_}, {b_}, {'0' if first else a}")
                while fi < len(fl) and self.kind(fl[fi]) == "z": e.item(fl[fi]); fi += 1
                if m == 7:
                    if t + 1 < n: head(t + 1)
                elif fi < len(fl) and self.kind(fl[fi]) == "s":
                    e.item(fl[fi]); fi += 1
                if reads: e.item(reads[m])
                quota = max(4, rem/(8 - m)); g = 0; last = None
                while fi < len(fl):
                    it = fl[fi]; k = self.kind(it); c = self.cost(it)
                    if m < 7:
                        left = len(fl) - fi
                        if k == "s" and g >= 4 and left <= 2*(6 - m): break
                        if k != "z" and g > 0 and g + c/2 > quota: break
                        if k == "d" and last == "t": break
                    e.item(it); fi += 1; g += c; last = k
                    if k != "s": rem -= c
    @staticmethod
    def spread(fill, items, t0, t1):
        n = len(items); span = t1 - t0
        for i, it in enumerate(items): fill[t0 + i*span//n].append(it)
    def pcost(self, it):
        return sum(1 if self.kind(x) == "s" else self.cost(x) for x in self.flat([it]))
    def pour(self, fill, items, t0, t1, bonus=None):
        base = [sum(map(self.pcost, fill[t])) - (bonus(t) if bonus else 0) for t in range(t0, t1)]
        need = sum(map(self.pcost, items))
        lo, hi = min(base), max(base) + need
        for _ in range(40):
            mid = (lo + hi)/2
            if sum(max(0, mid - b) for b in base) >= need: hi = mid
            else: lo = mid
        cum = 0; used = 0; k = 0
        for i, t in enumerate(range(t0, t1)):
            cum += max(0, hi - base[i]); mine = []
            while k < len(items) and (used + self.pcost(items[k])/2 <= cum or t == t1-1):
                used += self.pcost(items[k]); mine.append(items[k]); k += 1
            old = fill[t]; out = []; a = b = 0
            while a < len(old) or b < len(mine):
                if b >= len(mine) or (a < len(old) and a*len(mine) <= b*len(old)): out.append(old[a]); a += 1
                else: out.append(mine[b]); b += 1
            fill[t] = out
    def chunk_steps(self, acc, swap=False, xtag=None, inplace=False, nst=8, std=()):
        out = []
        for st in range(nst):
            xr = lambda s, tt: ((4*st + s) % 32)*8 + 4*tt
            f0 = st == 0 and not inplace
            for u in range(4):
                if st in std:
                    out.append(dict(fr=[(u, q) for q in range(4)], swap=swap, xtag=(xtag, 4*st+u) if xtag else None,
                                    mm=[(acc + 8*q + 4*tt, q, xr(u, tt), f0 and u == 0) for q in range(4) for tt in range(2)]))
                else:
                    mm = [(acc + 8*u, s, xr(s, 0), f0 and s == 0) for s in range(4)] + [(acc + 8*u + 4, s, xr(s, 1), f0 and s == 3) for s in (3, 2, 1, 0)]
                    out.append(dict(fr=[(s, u) for s in range(4)], swap=swap, xtag=(xtag, 4*st+3) if xtag else None, mm=mm))
        return out
    def stage_steps(self, acc, ks, first, xtag=None):
        out = []
        for u in range(4):
            xr = lambda s, tt: (4*ks + s)*8 + 4*tt
            mm = [(acc + 8*u, s, xr(s, 0), first and s == 0) for s in range(4)] + [(acc + 8*u + 4, s, xr(s, 1), first and s == 3) for s in (3, 2, 1, 0)]
            out.append(dict(fr=[(s, u) for s in range(4)], xtag=xtag, mm=mm))
        return out
    def half_steps(self, acc):
        out = []
        for st in range(4):
            for q in (0, 2, 1, 3):
                xr = lambda s, tt: (8*st + 4*(q >> 1) + s)*8 + 4*tt
                f0 = st == 0 and q < 2; a = acc + 8*(q & 1)
                mm = [(a, s, xr(s, 0), f0 and s == 0) for s in range(4)] + [(a + 4, s, xr(s, 1), f0 and s == 3) for s in (3, 2, 1, 0)]
                out.append(dict(fr=[(s, q) for s in range(4)], xtag=None, mm=mm))
        return out
    def at_least(self, t):
        def f(e): assert self.cur_step >= t, (self.cur_step, t)
        return f
    def cond0(self, body, pad=7):
        def f(e):
            skip = e.newlabel("c0")
            e(f"s_cmp_lg_u32 s{sLayer}, 0\n s_cbranch_scc1 {skip}")
            e2 = E(); e2.uid = e.uid + 1000
            save = self.e; self.e = e2
            body(e2)
            self.e = save; e.uid = e2.uid
            e.ins += ["; opt-begin"] + e2.ins + ["; opt-end"]
            e.tail += e2.tail
            e.label(skip)
        f.cost = 8
        return f
    def stats_load_items(self, base):
        it = []
        for i in range(4):
            off = f" offset:{i*1024}" if i else ""
            it.append(("vm", f"buffer_load_dwordx4 {vr(vK+4*i)}, v{vL16}, {srd(SRD_WS)}, s{base} offen{off} sc1", "stats"))
        return it
    def stats_items(self, mode):
        it = [("wait", "stats")]
        for k in range(4): it.append(f"v_add_f32 v{vK+k}, v{vK+k}, v{vK+4+k}")
        for k in range(4): it.append(f"v_add_f32 v{vK+8+k}, v{vK+8+k}, v{vK+12+k}")
        for k in range(4): it.append(f"v_add_f32 v{vK+k}, v{vK+k}, v{vK+8+k}")
        for sw in ("v_permlane32_swap_b32", "v_permlane16_swap_b32"):
            for k in range(4): it.append(f"v_mov_b32 v{vK+4+k}, v{vK+k}")
            for k in range(4): it.append(f"{sw} v{vK+k}, v{vK+4+k}")
            for k in range(4): it.append(f"v_add_f32 v{vK+k}, v{vK+k}, v{vK+4+k}")
        for tt in range(2): it.append(f"v_mul_f32 v{vC2+tt}, {hex(f2u(-1.0/1024))}, v{vK+2*tt}")
        for tt in range(2): it.append(f"v_mul_f32 v{vK+2*tt+1}, {hex(f2u(1.0/1024))}, v{vK+2*tt+1}")
        for tt in range(2): it.append(f"v_fma_f32 v{vK+2*tt+1}, -v{vC2+tt}, v{vC2+tt}, v{vK+2*tt+1}")
        for tt in range(2): it.append(f"v_max_f32 v{vK+2*tt+1}, 0, v{vK+2*tt+1}")
        for tt in range(2): it.append(f"v_add_f32 v{vK+2*tt+1}, {hex(f2u(1e-5))}, v{vK+2*tt+1}")
        for tt in range(2): it.append(f"v_rsq_f32 v{vC1+tt}, v{vK+2*tt+1}")
        if mode == "ffn":
            it.append("s_nop 0")
            for tt in range(2): it.append(f"v_mul_f32 v{vC1+tt}, {hex(f2u(-LOG2E))}, v{vC1+tt}")
        else:
            for k in (2, 3, 0, 1): it.append(("ds", f"ds_write_b32 v{vStW}, v{vC1+k} offset:{64*k}", "stw"))
        return it
    def vstat_reads(self):
        return [("wait", None, "stw")] + [("ds", f"ds_read_b128 {vr(vQ+4*k)}, v{vStR} offset:{64*k}", "str") for k in range(4)]
    def cs_reads(self, tile, nq=4, extra=None):
        it = []
        for q in range(nq):
            it.append(("ds", f"ds_read_b128 {vr(vT+4*q)}, v{extra if extra else vCsT} offset:{tile*256 + q*64}", "cs"))
        return it
    def kq_epilogue(self, acc, dst, c1, stores=None):
        it = [("wait", None, "cs")]
        for hh in range(2):
            for tt in range(2):
                for q in (2*hh, 2*hh+1):
                    a = acc + 8*q + 4*tt
                    for r in range(4): it.append(f"v_fmac_f32 v{a+r}, v{vT+4*q+r}, v{vC2+tt}")
                    for r in range(4): it.append(f"v_mul_f32 v{a+r}, v{c1+tt}, v{a+r}")
                    for k in range(2): it.append(f"v_cvt_pk_bf16_f32 v{dst+8*hh+4*tt+2*(q&1)+k}, v{a+2*k}, v{a+2*k+1}")
            for k in range(4): it.append(f"v_permlane16_swap_b32 v{dst+8*hh+k}, v{dst+8*hh+4+k}")
            if stores: it += stores[2*hh:2*hh+2]
        return it
    def csv_reads(self):
        return [("ds", f"ds_read_b32 v{vT+q}, v{vCsV} offset:{256 + q*64}", "cs") for q in range(4)]
    def v_epilogue(self, acc, stores):
        it = [("wait", None, ["cs", "str"])]
        for hh in range(2):
            for tt in range(2):
                d = vV + 8*hh + 4*tt
                for q in (2*hh, 2*hh+1):
                    a = acc + 8*q + 4*tt
                    for r in range(4): it.append(f"v_fmac_f32 v{a+r}, v{vT+q}, v{vQ+8+4*tt+r}")
                    for r in range(4): it.append(f"v_mul_f32 v{a+r}, v{vQ+4*tt+r}, v{a+r}")
                    for k in range(2): it.append(f"v_cvt_pk_bf16_f32 v{d+2*(q&1)+k}, v{a+2*k}, v{a+2*k+1}")
            for sw in ("v_permlane16_swap_b32", "v_permlane32_swap_b32"):
                for tt in range(2):
                    d = vV + 8*hh + 4*tt
                    for k in range(2): it.append(f"{sw} v{d+k}, v{d+2+k}")
            it += stores[2*hh:2*hh+2]
        return it
    def kv_stores(self, src, vaddr, tag):
        it = []
        for n in range(4):
            off = f" offset:{n*1024}" if n else ""
            it.append(("vm", f"buffer_store_dwordx4 {vr(src+4*n)}, v{vaddr}, {srd(SRD_WS)}, s{sKVown} offen{off} sc1", tag))
        return it
    def silu_epilogue(self, acc, nq, hoff, tag):
        it = [("wait", None, "cs")]
        if nq == 2:
            for k in range(8): it.append(f"v_add_f32 v{vT+k}, v{vT+k}, v{vT+8+k}")
        P = vK; T = vV
        n = 0
        for kp in range(nq//2):
            for tt in range(2):
                for q in (2*kp, 2*kp+1):
                    a = acc + 8*q + 4*tt; t = T + 4*(n % 2); n += 1
                    if self.o.get("nosilu"): continue
                    for r in range(4): it.append(f"v_fmac_f32 v{a+r}, v{vT+4*q+r}, v{vC2+tt}")
                    for r in range(4): it.append(f"v_mul_f32 v{a+r}, v{vC1+tt}, v{a+r}")
                    for r in range(4): it.append(f"v_exp_f32 v{t+r}, v{a+r}")
                    for r in range(4): it.append(f"v_fma_f32 v{t+r}, v{t+r}, s{sK}, s{sK}")
                    for r in range(4): it.append(f"v_rcp_f32 v{t+r}, v{t+r}")
                    for r in range(4): it.append(f"v_mul_f32 v{a+r}, v{t+r}, v{a+r}")
                    for k in range(2): it.append(f"v_cvt_pk_bf16_f32 v{P+8*kp+4*tt+2*(q&1)+k}, v{a+2*k}, v{a+2*k+1}")
                off = kp*2048 + tt*1024
                st = ("vm", f"buffer_store_dwordx4 {vr(P+8*kp+4*tt)}, v{vL16}, {srd(SRD_WS)}, s{sT1} offen" + (f" offset:{off}" if off else "") + " sc1", tag)
                it.append(list(hoff) + [st])
        return it
    def partial_items(self, acc, ch, kp):
        pk = self.pack_items(kp, acc)
        ad = [f"s_xor_b32 s{sT1}, s{sJ}, {4*self.F2X[ch]}", f"s_mul_i32 s{sT1}, s{sT1}, 12288", f"s_add_u32 s{sT1}, s{sT1}, s{sP}"] + ([f"s_add_u32 s{sT1}, s{sT1}, {ch*4096}"] if ch else [])
        st = [("vm", f"buffer_store_dwordx4 {vr(vK+8*kp+4*tt)}, v{vL16}, {srd(SRD_WS)}, s{sT1} offen" + (f" offset:{kp*2048+tt*1024}" if kp or tt else "") + " sc1", ("ps", ch)) for tt in range(2)]
        return (ad if kp == 0 else []) + pk[:4] + [st[0]] + pk[4:] + [st[1]]
    def partial_reg(self, ch): return 224 + 16*(ch % 2)
    def partial_loads(self, ch):
        it = [f"s_mul_i32 s{sOffX}, s{sJ}, 12288", f"s_add_u32 s{sOffX}, s{sOffX}, s{sP}"] + ([f"s_add_u32 s{sOffX}, s{sOffX}, {ch*4096}"] if ch else [])
        for n in range(4):
            it.append(("vm", f"buffer_load_dwordx4 {ar(self.partial_reg(ch)+4*n)}, v{vL16}, {srd(SRD_WS)}, s{sOffX} offen" + (f" offset:{n*1024}" if n else "") + " sc1", ("pl", ch)))
        return it
    def ones_items(self): return [f"v_mov_b32 v{vOnes+k}, 0x3f803f80" for k in range(4)]
    def ident_items(self):
        it = [f"v_mov_b32 v{vT+k}, 0" for k in (0, 1, 4, 5)]
        it += [f"v_mov_b32 v{vT+6}, 0x3f80", f"v_mov_b32 v{vT+7}, 0x3f800000",
               f"v_cndmask_b32 v{vT+2}, v{vT+6}, v{vT+7}, s[{sM1}:{sM1+1}]", f"v_cndmask_b32 v{vT+3}, v{vT}, v{vT+6}, s[{sM2}:{sM2+1}]",
               f"v_cndmask_b32 v{vT+2}, v{vT+2}, v{vT}, s[{sM2}:{sM2+1}]", f"v_cndmask_b32 v{vT+3}, v{vT+3}, v{vT+7}, s[{sM3}:{sM3+1}]",
               f"v_cndmask_b32 v{vT+2}, v{vT+2}, v{vT}, s[{sM3}:{sM3+1}]",
               [f"v_cmp_gt_u32 vcc, 0x1000, v{vStatSt}", "s_nop 1", f"v_cndmask_b32 v{vT+2}, v{vT}, v{vT+2}, vcc", f"v_cndmask_b32 v{vT+3}, v{vT}, v{vT+3}, vcc"]]
        return it
    def partial_adds(self, x):
        it = [("wait", ("pl", x))]
        for q in range(4):
            for tt in range(2):
                a = vr(vX + 8*q + 4*tt)
                it.append(f"v_mfma_f32_16x16x32_bf16 {a}, {vr(vT + (0 if q & 1 else 2))}, {ar(self.partial_reg(x) + 8*(q >> 1) + 4*tt)}, {a}")
        return it
    def pack_items(self, kp, acc=vX):
        it = []
        for tt in range(2):
            for q in (2*kp, 2*kp+1):
                a = acc + 8*q + 4*tt
                for k in range(2): it.append(f"v_cvt_pk_bf16_f32 v{vK+8*kp+4*tt+2*(q&1)+k}, v{a+2*k}, v{a+2*k+1}")
        return it
    def xstore_items(self, kp):
        return [("vm", f"buffer_store_dwordx4 {vr(vK+8*kp+4*tt)}, v{vL16}, {srd(SRD_WS)}, s{sXcur} offen" + (f" offset:{kp*2048+tt*1024}" if kp or tt else "") + " sc1", "pub") for tt in range(2)]
    def pub_addr(self, xbase, xadd):
        return [f"s_lshl_b32 s{sXcur}, s{sJ}, 12", f"s_add_u32 s{sXcur}, s{sXcur}, s{xbase}"] + ([f"s_add_u32 s{sXcur}, s{sXcur}, {xadd}"] if xadd else [])
    def stats_mfma(self, kp):
        S = vV; it = []
        for tt in range(2):
            p = vr(vK + 8*kp + 4*tt)
            it.append(f"v_mfma_f32_16x16x32_bf16 {vr(S+8*tt+4)}, {p}, {p}, {'0' if kp == 0 else vr(S+8*tt+4)}")
            it.append(f"v_mfma_f32_16x16x32_bf16 {vr(S+8*tt)}, {vr(vOnes)}, {p}, {'0' if kp == 0 else vr(S+8*tt)}")
        return it
    def stats_addr(self, stbase, stadd):
        return [[f"s_lshl_b32 s3, s{sJ}, 8", f"s_add_u32 s3, s3, s{stbase}"] + ([f"s_add_u32 s3, s3, {stadd}"] if stadd else [])]
    def publish_tail(self):
        e = self.e; S = vV
        pk = self.pack_items(1); st = self.xstore_items(1); mf = self.stats_mfma(1)
        self.emit(pk[:4] + [st[0]] + mf[:2] + pk[4:] + [st[1]] + mf[2:])
        self.stats_store()
    def stats_store(self):
        e = self.e; S = vV
        for tt in range(2):
            g = S + 8*tt + 4
            e(f"v_cndmask_b32 v{vQ+2*tt+1}, v{g}, v{g+1}, s[{sM1}:{sM1+1}]")
            e(f"v_cndmask_b32 v{vQ+2*tt+1}, v{vQ+2*tt+1}, v{g+2}, s[{sM2}:{sM2+1}]")
            e(f"v_cndmask_b32 v{vQ+2*tt+1}, v{vQ+2*tt+1}, v{g+3}, s[{sM3}:{sM3+1}]")
            e(f"v_mov_b32 v{vQ+2*tt}, v{S+8*tt}")
        e.vm(f"buffer_store_dwordx4 {vr(vQ)}, v{vStatSt}, {srd(SRD_WS)}, s3 offen sc1", "pub")
    def emit(self, items):
        for it in items: self.e.item(it)
    def x_sched(self, fill, tag, tabs, first, last, t0):
        for st in range(first, last):
            self.spread(fill, self.xload_items(tabs[st][0], tabs[st][1], 4*st, tag), t0 + 4*(st-first), t0 + 4*(st-first) + 4)
    def w_schedule_head(self, fill, s0, last):
        self.spread(fill, self.dma_items(s0+8) + self.dma_items(s0+9), 16, 24)
        self.spread(fill, self.dma_items(s0+10) + self.dma_items(s0+11), 24, 30)
        for k in range(12, last - s0 + 1): self.spread(fill, self.dma_items(s0+k), 4*(k-4)-2, 4*(k-4)+2)
    def cs_selector(self, d):
        e = self.e
        e(f"v_bfe_u32 v0, v{vL16}, 4, 3")
        for k in range(4):
            e(f"v_cmp_eq_u32 vcc, {2*k}, v0\n v_mov_b32 v{d+4}, 0x3f80\n v_cndmask_b32 v{d+k}, 0, v{d+4}, vcc")
            e(f"v_cmp_eq_u32 vcc, {2*k+1}, v0\n v_mov_b32 v{d+4}, 0x3f800000\n v_cndmask_b32 v{d+k}, v{d+k}, v{d+4}, vcc")
    def rows_reduce(self, r):
        e = self.e
        for sw in ("v_permlane32_swap_b32", "v_permlane16_swap_b32"):
            for k in range(4): e(f"v_mov_b32 v{r+4+k}, v{r+k}")
            for k in range(4): e(f"{sw} v{r+k}, v{r+4+k}")
            for k in range(4): e(f"v_add_f32 v{r+k}, v{r+k}, v{r+4+k}")
    def cs_write_partials(self, acc, ntile, T):
        e = self.e
        e(f"v_bfe_u32 v{T}, v{vL16}, 7, 1\n v_lshlrev_b32 v{T}, 10, v{T}\n v_bfe_u32 v{T+1}, v{vL16}, 4, 3\n v_lshl_add_u32 v{T}, v{T+1}, 5, v{T}")
        e(f"v_bfe_u32 v{T+1}, v{vL16}, 8, 1\n v_lshl_add_u32 v{T}, v{T+1}, 4, v{T}\n v_add_u32 v{T}, s{sStg}, v{T}")
        for t in range(ntile): e.ds(f"ds_write_b128 v{T}, {vr(acc+4*t)} offset:{t*256}", "csw")
    def cs_addr(self, ntile, tile0, sh):
        self.e(f"s_min_u32 s{sT0}, s{sW}, {ntile-1}\n s_lshl_b32 s{sT1}, s{sJ}, 3\n s_add_u32 s{sT1}, s{sT1}, s{sT0}\n s_add_u32 s{sT1}, s{sT1}, {tile0}\n s_lshl_b32 s{sT1}, s{sT1}, {sh}")
    def cs_reduce_store(self, ntile, tile0, r, tag=None):
        e = self.e
        self.cs_addr(ntile, tile0, 4)
        e(f"s_add_u32 s{sT1}, s{sT1}, s{sG}\n s_lshl_b32 s{sT1}, s{sT1}, 8\n s_add_u32 s{sT1}, s{sT1}, {WS_CSP}\n s_lshl_b32 s{sT0}, s{sT0}, 8\n s_add_u32 s{sT0}, s{sT0}, {L_STG}")
        e(f"v_lshrrev_b32 v{r+8}, 8, v{vL16}\n v_mul_u32_u24 v{r+8}, {STGW}, v{r+8}\n v_and_b32 v{r+9}, 0xf0, v{vL16}\n v_add3_u32 v{r+8}, v{r+8}, v{r+9}, s{sT0}")
        for p in range(2): e.ds(f"ds_read_b128 {vr(r+4*p)}, v{r+8} offset:{p*1024}", "csr")
        e.wait(lg="csr")
        for k in range(4): e(f"v_add_f32 v{r+k}, v{r+k}, v{r+4+k}")
        self.rows_reduce(r)
        e.vm(f"buffer_store_dwordx4 {vr(r)}, v{vStatSt}, {srd(SRD_WS)}, s{sT1} offen sc1", tag)
    def cs_gather_loads(self, ntile, tile0, r):
        e = self.e
        self.cs_addr(ntile, tile0, 12)
        e(f"s_add_u32 s{sT1}, s{sT1}, {WS_CSP}")
        for i in range(4): e.vm(f"buffer_load_dwordx4 {vr(r+4*i)}, v{vL16}, {srd(SRD_WS)}, s{sT1} offen" + (f" offset:{i*1024}" if i else "") + " sc1", "csg")
    def cs_gather_finish(self, ntile, tile0, r):
        e = self.e
        for k in range(8): e(f"v_add_f32 v{r+k}, v{r+k}, v{r+8+k}")
        for k in range(4): e(f"v_add_f32 v{r+k}, v{r+k}, v{r+4+k}")
        self.rows_reduce(r)
        e(f"s_min_u32 s{sT0}, s{sW}, {ntile-1}\n s_lshl_b32 s{sT0}, s{sT0}, 8\n s_add_u32 s{sT0}, s{sT0}, {L_CS + tile0*256}\n v_and_b32 v{r+8}, 0xf0, v{vL16}\n v_add_u32 v{r+8}, s{sT0}, v{r+8}")
        e.ds(f"ds_write_b128 v{r+8}, {vr(r)}", "csf")
    def cs_consume_pieces(self, ev, ntile, tile0, r):
        main = self.e; pos = {}
        def a(e): e.item(self.poll_load(ev)); pos["a"] = main.vm_n
        def b(e):
            e(f"s_waitcnt vmcnt({main.vm_n - pos['a']})")
            e.vm_tag["poll"] = 0; self.poll_wait(ev)
            self.cs_gather_loads(ntile, tile0, r); pos["b"] = main.vm_n
        def c(e): e(f"s_waitcnt vmcnt({main.vm_n - pos['b']})"); self.cs_gather_finish(ntile, tile0, r)
        return self.cond0(a), self.cond0(b), self.cond0(c)
    def dummy(self): return 0 if any(k.startswith("prof_") for k in self.o) else vProf
    def prefetch(self, r):
        return [f"s_add_u32 s{sT0}, s{sPf}, {r*896*1024}", ("vm", f"buffer_load_dword v{self.dummy()}, v{vL16}, {srd(SRD_X)}, s{sT0} offen")]
    def helper(self, kind, arg):
        if self.o.get("nohelp"): return []
        d = self.dummy()
        if kind == "f": return [("vm", f"buffer_load_dword v{d}, v{vB2}, {srd(SRD_W2)}, s{sHF+arg} offen")]
        if kind == "wo":
            return [f"s_lshl_b32 s{sT0}, s{sHrow}, 11", f"s_or_b32 s{sT1}, s{sJ}, 7", f"s_sub_u32 s{sT1}, s{sT1}, 4", f"s_lshl_b32 s{sT1}, s{sT1}, 7", f"s_add_u32 s{sT0}, s{sT0}, s{sT1}",
                    ("vm", f"buffer_load_dword v{d}, v{vB2}, {srd(SRD_WO)}, s{sT0} offen")]
        sr, base, rs = (SRD_QKV, vBQ, 6144) if kind == "qkv" else (SRD_W1, vB1, 7168)
        it = [f"s_mul_i32 s{sT0}, s{sHrow}, {rs}"]
        if kind == "half": it += [f"s_lshl_b32 s{sT1}, s{sJ}, 7", f"s_sub_u32 s{sT0}, s{sT0}, s{sT1}", f"s_add_u32 s{sT0}, s{sT0}, {6144 + 384}"]
        else: it += [f"s_add_u32 s{sT0}, s{sT0}, s{sHcol}"] + ([f"s_add_u32 s{sT0}, s{sT0}, {arg}"] if arg else [])
        return it + [("vm", f"buffer_load_dword v{d}, v{base}, {srd(sr)}, s{sT0} offen")]
    def w1_share_dma(self, pieces):
        def body(e):
            e(f"s_mov_b32 s3, m0")
            for n in pieces:
                if n == pieces[0] or n == 6:
                    sh, mk = (7, 0x70) if n < 6 else (6, 0x30)
                    e(f"s_lshl_b32 s{sT0}, s{sTB}, 4\n v_lshrrev_b32 v0, {sh}, v{vL16}\n v_add_u32 v0, s{sT0}, v0\n v_mul_u32_u24 v0, 7168, v0\n v_and_b32 v{vSum+3}, {mk}, v{vL16}\n v_add_u32 v0, v0, v{vSum+3}")
                    e(f"s_lshl_b32 s{sT1}, s{sJ}, {sh}")
                e(f"s_add_u32 m0, s{sStg}, {n*1024}")
                e(f"s_add_u32 s{sT0}, s{sT1}, {(n//2)*2048 + (n % 2)*8*7168}")
                e.vm(f"buffer_load_dwordx4 v0, {srd(SRD_W1)}, s{sT0} offen lds")
            e(f"s_mov_b32 m0, s3")
        return self.cond0(body)
    def cs_produce(self):
        def body(e):
            e(f"v_add_u32 v{vB+31}, s{sStg}, v{vL16}")
            for n in range(7): e.ds(f"ds_read_b128 {vr(vB+4*n)}, v{vB+31} offset:{n*1024}")
            self.cs_selector(vT)
            e.wait(lg="all")
            for n in range(7):
                d = vr(vA + 4*(n//2))
                e(f"v_mfma_f32_16x16x32_bf16 {d}, {vr(vT)}, {vr(vB+4*n)}, {'0' if n % 2 == 0 else d}")
            self.cs_write_partials(vA, 4, vB + 28)
        return self.cond0(body)
    def cs_produce_b(self): return self.cond0(lambda e: self.cs_reduce_store(4, 3, vB))
    def kfrag(self, hh, b, s): return ar(128*hh + 8*b + 4*s) if b < 8 else vr(vK + 8*hh + 4*s)
    def vfrag(self, hh, b, s): return ar(128*hh + 64 + 8*b + 4*s) if b < 8 else vr(vV + 8*hh + 4*s)
    def kv_dma_items(self, isv):
        it = []
        for i in range(2):
            it.append(f"s_add_u32 m0, s{sLdsW2}, {isv*49152 + i*4096}")
            for n in range(4):
                it.append(("vm", f"buffer_load_dwordx4 v{vL16b if isv else vL16}, {srd(SRD_WS)}, s{sKVb+i} offen" + (f" offset:{n*1024}" if n else "") + " sc1 lds", ("kvd", isv)))
        return it
    def kv_own_writes(self, isv):
        return [("ds", f"ds_write_b128 v{vKVb if isv else vKVa}, {vr((vV if isv else vK) + 4*n)} offset:{32768 + n*1024}", ("kvw", isv)) for n in range(4)]
    def kv_reads(self, isv, hh, b):
        return [("ds", f"ds_read_b128 {ar(128*hh + 64*isv + 8*b + 4*s)}, v{vKVb if isv else vKVa} offset:{b*4096 + hh*2048 + s*1024}", ("kv", isv, hh, b)) for s in range(2)]
    def mask_items(self):
        MD, MO = vB, vB + 16; vFD = vM
        it = [f"v_bfe_u32 v{MD}, v{vL16}, 4, 5", f"v_lshrrev_b32 v{vFD}, 9, v{vL16}", f"v_lshlrev_b32 v{vFD}, 2, v{vFD}",
              f"v_sub_u32 v{vFD}, v{MD}, v{vFD}", f"v_cvt_f32_i32 v{vFD}, v{vFD}"]
        for r in range(16):
            c = float(8*(r >> 2) + (r & 3))
            it.append([f"s_mov_b32 s{sT1}, {hex(f2u(c))}", f"v_sub_f32_e64 v{MD+r}, s{sT1}, v{vFD} clamp"])
            it.append(f"v_sub_f32 v{MO+r}, 1.0, v{MD+r}")
            it.append(f"v_mul_f32 v{MD+r}, {hex(f2u(-1e30))}, v{MD+r}")
            it.append(f"v_mul_f32 v{MO+r}, {hex(f2u(-1e30))}, v{MO+r}")
        return it
    def masked(self, b, ops):
        if b >= 8: return list(ops)
        return [f"s_bfe_i64 exec, s[{sVal}:{sVal+1}], {hex(0x10000 | b)}"] + list(ops) + ["s_mov_b64 exec, -1"]
    def attention(self, side1, side2, final_side):
        e = self.e
        MD, MO = vB, vB + 16; TF = vW; S = [vW + 16, vW + 32]; S2 = vA; O = [vA + 16, vA + 16]; P = [vT, vT + 8]
        m = [vM, vC2]
        qk = lambda hh, b, d, c: [f"v_mfma_f32_32x32x16_bf16 {vr(d,16)}, {self.kfrag(hh,b,0)}, {vr(vQ+8*hh)}, {c}",
                                  f"v_mfma_f32_32x32x16_bf16 {vr(d,16)}, {self.kfrag(hh,b,1)}, {vr(vQ+8*hh+4)}, {vr(d,16)}"]
        def s1(n):
            hh, b = divmod(n, 9)
            if b < 8: e.wait(lg=("kv", 0, hh, b))
            return qk(hh, b, S[b % 2], vr(MO, 16) if b == 0 else vr(MD, 16) if b == 8 else "0")
        def tile(n):
            hh, b = divmod(n, 9)
            return S2 if b == 8 else S[b % 2]
        def s2(n):
            hh, b = divmod(n, 9)
            return qk(hh, b, tile(n), vr(tile(n), 16) if b in (0, 8) else vr(TF, 16))
        def pv(n):
            hh, b = divmod(n, 9); p = P[b % 2]; o = vr(O[hh], 16)
            if b < 8: e.wait(lg=("kv", 1, hh, b))
            return [f"v_mfma_f32_32x32x16_bf16 {o}, {self.vfrag(hh,b,0)}, {vr(p)}, {'0' if b == 0 else o}",
                    f"v_mfma_f32_32x32x16_bf16 {o}, {self.vfrag(hh,b,1)}, {vr(p+4)}, {o}",
                    f"v_mfma_f32_16x16x32_bf16 {vr(vSum)}, {vr(vSel)}, {vr(p)}, {'0' if b == 0 else vr(vSum)}",
                    f"v_mfma_f32_16x16x32_bf16 {vr(vSum)}, {vr(vSel)}, {vr(p+4)}, {vr(vSum)}"]
        fin = lambda hh: [f"v_mov_b32 v0, v{m[hh]}", [f"v_permlane32_swap_b32 v{m[hh]}, v0", f"v_max_f32 v{m[hh]}, v{m[hh]}, v0"]]
        init = lambda d, src, hh: [f"v_sub_f32 v{d+r}, {'0' if src is None else 'v%d' % (src+r)}, v{m[hh]}" for r in range(16)]
        def zero(p, n):
            def f(e_):
                l = e_.newlabel("z"); e_(f"s_cmp_eq_u32 s{sNinv}, 0\n s_cbranch_scc1 {l}")
                e_.raw("; opt-begin")
                for r in range(n): e_(f"v_mov_b32 v{p+r}, 0")
                e_.raw("; opt-end"); e_.label(l)
            f.cost = 8
            return f
        def tail(hh):
            it = [f"v_mul_f32 v{O[hh]+r}, v{vC1}, v{O[hh]+r}" for r in range(16)]
            it += [f"v_cvt_pk_bf16_f32 v{S2+k}, v{O[hh]+2*k}, v{O[hh]+2*k+1}" for k in range(8)]
            it += [f"v_permlane16_swap_b32 v{S2+k}, v{S2+4+k}" for k in range(4)]
            it += [("vm", f"buffer_store_dwordx4 {vr(S2+4*tt)}, v{vL16}, {srd(SRD_WS)}, s3 offen" + (" offset:1024" if tt else "") + " sc1", ("o", hh)) for tt in range(2)]
            return it
        oaddr = lambda hh: [[f"s_lshl_b32 s3, s{sJ}, 11", f"s_add_u32 s3, s3, s{sXcur if hh else sO}"]]
        def mix(a, b):
            out = []; x = y = 0
            while x < len(a) or y < len(b):
                if y >= len(b) or (x < len(a) and x*len(b) <= y*len(a)): out.append(a[x]); x += 1
                else: out.append(b[y]); y += 1
            return out
        def seg1(hh, b, mm, sd):
            sd = self.flat(sd); ng = max(1, len(mm))
            for g in range(ng):
                if mm: e(mm[g])
                self.emit(sd[g*len(sd)//ng:(g+1)*len(sd)//ng])
            s = S[b % 2]
            self.emit(self.masked(b, [f"v_max3_f32 v{m[hh]}, v{m[hh]}, v{s+2*k}, v{s+2*k+1}" for k in range(8)]))
        def seg2(n, mm, sd):
            hh, b = divmod(n, 9); s = tile(n); p = P[b % 2]
            ex = [f"v_exp_f32 v{s+r}, v{s+r}" for r in range(16)]
            sd = self.flat(sd); cuts = [0, 3, 6, 9, 12, 14, 16]; ng = len(mm)
            for g in range(6):
                if g < ng:
                    e(mm[g]); self.emit(sd[g*len(sd)//ng:(g+1)*len(sd)//ng])
                self.emit(ex[cuts[g]:cuts[g+1]])
            self.emit(self.masked(b, [f"v_cvt_pk_bf16_f32 v{p+k}, v{s+2*k}, v{s+2*k+1}" for k in range(8)]))
        e(f"v_mov_b32 v{m[0]}, 0xff800000")
        self.emit(s1(0))
        for hh in range(2):
            own = [[] for _ in range(9)]
            if hh:
                own[1] = [f"v_rcp_f32 v{vC1}, v{vSum}"] + oaddr(0); self.spread(own, tail(0), 1, 3)
            own[8].append(zero(P[0], 16))
            for b in range(9):
                mm = s1(9*hh + b + 1) if b < 8 else []
                if hh and b == 0:
                    pp = pv(8); mm = [pp[2], pp[3], pp[0], pp[1]] + mm
                seg1(hh, b, mm, mix(side1[9*hh+b], own[b]))
            self.stamp(f"p1{'ab'[hh]}_end")
            mm = s2(9*hh); tf = init(TF, None, hh)
            self.emit(fin(hh) + init(S[0], MO, hh) + tf[:2] + [mm[0]] + tf[2:8] + [mm[1]] + tf[8:] + init(S2, MD, hh))
            for b in range(9):
                n = 9*hh + b; own = []
                mm = s2(n+1) if b < 8 else s1(9) if hh == 0 else []
                if b >= 1: mm = mm + pv(n-1)
                if n == 7: own = [f"v_mov_b32 v{m[1]}, 0xff800000"]
                seg2(n, mm, mix(side2[n], own))
            if hh == 0: self.stamp("p2a_end")
        mm = pv(17); fs = self.flat(oaddr(1) + final_side)
        for g, x in enumerate([mm[2], mm[3], mm[0], mm[1]]):
            e(x); self.emit(fs[g*len(fs)//4:(g+1)*len(fs)//4])
        e(f"v_rcp_f32 v{vC1}, v{vSum}")
        self.emit(tail(1))
    def setup(self):
        e = self.e
        if self.stamps: e("s_memtime s[92:93]\n s_memrealtime s[94:95]")
        e("s_cmp_ge_u32 s2, 256\n s_cbranch_scc1 Lend")
        e("s_load_dwordx16 s[48:63], s[0:1], 0\n s_load_dwordx2 s[64:65], s[0:1], 64")
        e(f"v_lshrrev_b32 v1, 6, v0\n v_and_b32 v0, 63, v0\n v_readfirstlane_b32 s{sW}, v1")
        e(f"s_and_b32 s{sT0}, s2, 7\n s_lshr_b32 s{sT1}, s2, 3")
        e(f"s_lshr_b32 s{sG}, s{sT0}, 1\n s_lshl_b32 s{sG}, s{sG}, 2\n s_lshr_b32 s3, s{sT1}, 3\n s_add_u32 s{sG}, s{sG}, s3")
        e(f"s_and_b32 s{sJ}, s{sT0}, 1\n s_lshl_b32 s{sJ}, s{sJ}, 3\n s_and_b32 s3, s{sT1}, 7\n s_add_u32 s{sJ}, s{sJ}, s3")
        e(f"s_lshl_b32 s{sTB}, s{sG}, 2\n s_add_u32 s{sTB}, s{sTB}, s{sW}")
        e(f"s_lshl_b32 s{sLdsW}, s{sW}, 12\n s_mov_b32 s{sLayer}, 0\n s_mov_b32 s{sSpin}, 0")
        e(f"v_and_b32 v44, 15, v0\n v_lshrrev_b32 v45, 4, v0\n v_lshrrev_b32 v46, 3, v0")
        e(f"v_and_b32 v61, 7, v0\n v_lshlrev_b32 v61, 4, v61\n v_lshl_add_u32 v62, v46, 11, v61")
        e(f"s_lshl_b32 s{sT0}, s{sTB}, 4\n v_add_u32 v60, s{sT0}, v46\n v_mul_u32_u24 v60, 6144, v60\n v_add_u32 v60, v60, v61")
        e(f"v_min_u32 v58, 3, v46\n v_lshl_add_u32 v58, v58, 10, v61\n v_min_u32 v59, 5, v46\n v_lshl_add_u32 v59, v59, 10, v61")
        e(f"s_lshl_b32 s{sOffX}, s2, 2\n s_add_u32 s{sOffX}, s{sOffX}, s{sW}\n s_mul_i32 s{sOffW}, s{sOffX}, 6144\n s_lshl_b32 s{sOffX}, s{sOffX}, 12")
        e(f"s_lshl_b32 s{sXcur}, s{sTB}, 16\n s_lshl_b32 s{sT1}, s{sJ}, 7\n s_add_u32 s{sT0}, s{sXcur}, s{sT1}")
        e(f"s_mul_i32 s{sStg}, s{sW}, {STGW}\n s_add_u32 s{sStg}, s{sStg}, {L_STG}\n s_mov_b32 m0, s{sStg}")
        e(f"s_mov_b32 s{SRD_X+2}, {2048*1024*2}\n s_mov_b32 s{SRD_X+3}, 0x00020000\n s_mov_b32 s{SRD_QKV+2}, {1024*3072*2}\n s_mov_b32 s{SRD_QKV+3}, 0x00020000")
        e("s_waitcnt lgkmcnt(0)")
        e(f"s_mov_b32 s{SRD_X}, s48\n s_and_b32 s{SRD_X+1}, s49, 0xffff\n s_mov_b32 s{SRD_QKV}, s50\n s_and_b32 s{SRD_QKV+1}, s51, 0xffff")
        if not self.o.get("nohelp"):
            e.vm(f"buffer_load_dword v{vA+4}, v58, {srd(SRD_X)}, s{sOffX} offen offset:384")
            e.vm(f"buffer_load_dword v{vA+5}, v59, {srd(SRD_QKV)}, s{sOffW} offen offset:384")
        for i in range(4):
            e.vm(f"buffer_load_dwordx4 v62, {srd(SRD_X)}, s{sT0} offen" + (f" offset:{i*1024}" if i else "") + " lds", "res")
            if i < 3: e(f"s_add_u32 s{sT0}, s{sT0}, {8*2048 - 1024}")
        def share(n):
            e(f"s_add_u32 s{sT0}, s{sT1}, {(2048, 4096, 0)[n//2] + (n % 2)*8*6144}")
            e.vm(f"buffer_load_dwordx4 {vr(vB+4*n)}, v60, {srd(SRD_QKV)}, s{sT0} offen", "sh")
        for n in range(2): share(n)
        e(f"v_lshlrev_b32 v{vL16}, 4, v0")
        if not self.o.get("nocodepf"):
            e(f"s_getpc_b64 s[96:97]")
            e.label("Lpc")
            e(f"s_sub_u32 s96, s96, Lpc-{KNAME}\n s_subb_u32 s97, s97, 0\n s_and_b32 s97, s97, 0xffff\n s_mov_b32 s98, Lcodeend-{KNAME}\n s_mov_b32 s99, 0x00020000")
            e(f"s_lshr_b32 s{sT0}, s2, 3\n s_lshl_b32 s{sT0}, s{sT0}, 12\n s_lshl_b32 s3, s{sW}, 10\n s_add_u32 s{sT0}, s{sT0}, s3")
            e.vm(f"buffer_load_dwordx4 {vr(vA)}, v{vL16}, s[96:99], s{sT0} offen")
        for n in range(2, 6): share(n)
        for (d, p, n) in [(SRD_WO, 52, 1024*1024*2), (SRD_W1, 56, 1024*3584*2),
                          (SRD_W2, 58, 3584*1024*2), (SRD_OUT, 60, 2048*1024*2), (SRD_DBG, 62, 256), (SRD_WS, 64, WS_BYTES)]:
            e(f"s_mov_b32 s{d}, s{p}\n s_and_b32 s{d+1}, s{p+1}, 0xffff\n s_mov_b32 s{d+2}, {n}\n s_mov_b32 s{d+3}, 0x00020000")
        e(f"v_add_u32 v{vL16b}, 4096, v{vL16}")
        e(f"v_cmp_eq_u32 vcc, 0, v0\n v_mov_b32 v60, {OOB}\n v_cndmask_b32 v{vFlagOff}, v60, v0, vcc")
        if self.stamps:
            e(f"s_lshl_b32 s{sStamp}, s2, 2\n s_add_u32 s{sStamp}, s{sStamp}, s{sW}\n s_lshl_b32 s{sStamp}, s{sStamp}, 10\n s_add_u32 s{sStamp}, s{sStamp}, {WS_STAMP}")
            e("v_mov_b32 v63, v0")
            self.snames.append("start")
            e("v_mov_b32 v0, s92")
            e.vm(f"buffer_store_dword v0, v{vFlagOff}, {srd(SRD_WS)}, s{sStamp} offen")
            e("s_and_b32 s94, s94, 0xffffff\n v_mov_b32 v0, s94")
            e.vm(f"buffer_store_dword v0, v{vFlagOff}, {srd(SRD_WS)}, s{sStamp} offen offset:4")
            self.stamp("entry")
            e("v_mov_b32 v0, v63")
        if self.o.get("tlb"):
            sh = self.o["tlb"]
            e(f"s_lshr_b32 s{sT0}, s2, 3\n s_lshl_b32 s{sT0}, s{sT0}, 2\n s_add_u32 s{sT0}, s{sT0}, s{sW}\n s_lshl_b32 s{sT0}, s{sT0}, 20")
            e(f"v_lshlrev_b32 v61, {sh}, v0\n v_cmp_gt_u32 vcc, 0x100000, v61\n v_cndmask_b32 v61, v60, v61, vcc")
            for n, sr in enumerate((SRD_WS, SRD_WO, SRD_W1, SRD_W2, SRD_OUT)):
                e.vm(f"buffer_load_dword v{vA+6+n}, v61, {srd(sr)}, s{sT0} offen sc1", "sh")
        e(f"s_lshl_b32 s{sLrow}, s{sTB}, 11\n s_lshl_b32 s{sT1}, s{sJ}, 7\n s_add_u32 s{sT0}, s{sLrow}, s{sT1}\n v_mov_b32 v61, 0\n v_and_b32 v62, 31, v0\n v_lshlrev_b32 v62, 2, v62")
        e.vm(f"buffer_store_dword v61, v62, {srd(SRD_WS)}, s{sT0} offen sc1", "pub")
        e(f"v_mov_b32 v{vFlagVal}, 1\n s_andn2_b32 s{sLkvS}, s{sT0}, 2048")
        e(f"s_add_u32 s{sT0}, s{sTB}, s{sW}\n s_sub_i32 s{sT0}, s{sT0}, 8\n s_max_i32 s{sT0}, s{sT0}, 0\n s_lshl_b32 s{sT0}, s{sT0}, 11\n s_add_u32 s{sLkvP}, s{sT0}, s{sT1}")
        e(f"s_and_b32 s3, s{sJ}, {self.o.get('j1', 1)}\n s_xor_b32 s3, s3, s{sG}\n s_and_b32 s3, s3, 1")
        for st in range(8): e(f"s_xor_b32 s{sRot8+st}, s3, {st}\n s_lshl_b32 s{sRot8+st}, s{sRot8+st}, 13")
        e(f"s_and_b32 s{sT0}, s{sJ}, {self.o.get('j4', 0)}\n s_xor_b32 s{sT0}, s{sT0}, s{sG}\n s_and_b32 s{sT0}, s{sT0}, {self.o.get('g4', 3)}")
        for st in range(4): e(f"s_xor_b32 s{sRot4+st}, s{sT0}, {st}\n s_lshl_b32 s{sRot4+st}, s{sRot4+st}, 13")
        e(f"s_lshl_b32 s{sT0}, s{sTB}, 16")
        for (d, r) in [(sXA, R_XA), (sXB, R_XB), (sO, R_O)]: e(f"s_add_u32 s{d}, s{sT0}, {R0 + r}")
        e(f"s_mul_i32 s{sH}, s{sTB}, 229376\n s_add_u32 s{sH}, s{sH}, {R0 + R_H}")
        e(f"s_lshl_b32 s{sT0}, s{sTB}, 12\n s_add_u32 s{sStA}, s{sT0}, {R0 + R_STA}\n s_add_u32 s{sStB}, s{sT0}, {R0 + R_STB}")
        e(f"s_lshl_b32 s{sT1}, s{sJ}, 19\n s_add_u32 s{sT1}, s{sT1}, {R0 + R_KV}")
        e(f"s_lshl_b32 s{sT0}, s{sTB}, 13\n s_add_u32 s{sKVown}, s{sT0}, s{sT1}")
        for b in range(2):
            e(f"s_add_u32 s{sT0}, s{sTB}, s{sW}\n s_sub_i32 s{sT0}, s{sT0}, {8-b}\n s_max_i32 s{sT0}, s{sT0}, 0\n s_lshl_b32 s{sT0}, s{sT0}, 13\n s_add_u32 s{sKVb+b}, s{sT0}, s{sT1}")
        e(f"s_lshl_b32 s{sLdsW2}, s{sW}, 13")
        e(f"s_mul_i32 s{sPf}, s{sG}, 14\n s_add_u32 s{sPf}, s{sPf}, s{sJ}\n s_cmp_gt_u32 s{sJ}, 3\n s_subb_u32 s{sPf}, s{sPf}, 0\n s_cmp_gt_u32 s{sJ}, 11\n s_subb_u32 s{sPf}, s{sPf}, 0")
        e(f"s_lshl_b32 s{sPf}, s{sPf}, 2\n s_add_u32 s{sPf}, s{sPf}, s{sW}\n s_lshl_b32 s{sPf}, s{sPf}, 10")
        e(f"s_lshr_b32 s{sT0}, s{sJ}, 2\n s_lshl_b32 s{sHs}, s{sT0}, 13\n s_lshl_b32 s{sT0}, s{sT0}, 19")
        for ch, x in enumerate(self.F2X):
            e(f"s_xor_b32 s{sT1}, s{sJ}, {4*x}\n s_lshl_b32 s{sT1}, s{sT1}, 7\n s_add_u32 s{sF+ch}, s{sT0}, s{sT1}")
        e(f"s_lshl_b32 s{sPar0}, s3, 18\n s_xor_b32 s{sPar1}, s{sPar0}, {1 << 18}")
        e(f"s_mul_i32 s{sP}, s{sTB}, {16*12288}\n s_add_u32 s{sP}, s{sP}, {R0 + R_P}")
        e(f"s_and_b32 s{sT0}, s{sG}, 3\n s_lshl_b32 s{sT0}, s{sT0}, 1\n s_bfe_u32 s{sT1}, s{sJ}, 0x10002\n s_add_u32 s{sOffX}, s{sT0}, s{sT1}")
        e(f"s_and_b32 s{sOffW}, s{sJ}, 3\n s_lshl_b32 s{sOffW}, s{sOffW}, 3\n s_lshl_b32 s{sHrow}, s{sOffX}, 7\n s_add_u32 s{sHrow}, s{sHrow}, s{sOffW}")
        e(f"s_and_b32 s{sT0}, s{sJ}, 7\n s_sub_i32 s{sHcol}, 3, s{sT0}\n s_lshl_b32 s{sHcol}, s{sHcol}, 7")
        e(f"s_lshr_b32 s{sT0}, s{sOffX}, 1\n s_lshl_b32 s{sT0}, s{sT0}, 10\n s_and_b32 s{sT1}, s{sOffX}, 1\n s_lshl_b32 s{sT1}, s{sT1}, 7")
        e(f"s_cmp_lt_u32 s{sOffX}, 6\n s_cselect_b32 s{sT1}, s{sT1}, 0\n s_cselect_b32 s{sOffX}, 8, 7\n s_add_u32 s{sT0}, s{sT0}, s{sT1}\n s_add_u32 s{sOffW}, s{sOffW}, s{sT0}")
        for ch, x in enumerate(self.F2X):
            e(f"s_and_b32 s{sT0}, s{sJ}, 8\n s_or_b32 s{sT0}, s{sT0}, {(3 ^ (4*x)) & 7}\n s_lshr_b32 s{sT1}, s{sT0}, 2\n s_lshl_b32 s{sT1}, s{sT1}, s{sOffX}")
            e(f"s_add_u32 s{sT1}, s{sT1}, s{sOffW}\n s_lshl_b32 s{sT1}, s{sT1}, 11\n s_xor_b32 s{sT0}, s{sT0}, {4*x}\n s_lshl_b32 s{sT0}, s{sT0}, 7\n s_add_u32 s{sHF+ch}, s{sT0}, s{sT1}")
        e(f"s_sub_i32 s{sNinv}, 8, s{sTB}\n s_max_i32 s{sNinv}, s{sNinv}, 0")
        e(f"s_lshl_b32 s{sVal}, -1, s{sNinv}\n s_mov_b32 s{sVal+1}, 0")
        e(f"s_mov_b32 s{sK}, {hex(f2u(-LOG2E))}")
        for (d, m) in [(sM1, 0x22222222), (sM2, 0x44444444), (sM3, 0x88888888)]: e(f"s_mov_b32 s{d}, {hex(m)}\n s_mov_b32 s{d+1}, {hex(m)}")
        e(f"v_add_u32 v{vKVa}, s{sLdsW}, v{vL16}\n v_add_u32 v{vKVb}, 49152, v{vKVa}")
        e(f"v_lshlrev_b32 v64, 4, v45\n v_add_u32 v{vCsT}, {L_CS}, v64\n v_lshlrev_b32 v65, 2, v44\n v_add_u32 v{vCsV}, {L_CS}, v65")
        e(f"s_lshl_b32 s{sT0}, s{sW}, 9\n s_add_u32 s{sT0}, s{sT0}, {L_SCR}\n v_add_u32 v{vStW}, s{sT0}, v65\n v_add_u32 v{vStR}, s{sT0}, v64")
        e(f"v_lshrrev_b32 v64, 2, v44\n v_cmp_eq_u32 vcc, v64, v45\n v_lshlrev_b32 v65, 4, v44\n v_mov_b32 v66, {OOB}\n v_cndmask_b32 v{vStatSt}, v66, v65, vcc")
        e(f"v_mov_b32 v{vProf}, 0")
        e(f"v_lshrrev_b32 v64, 2, v44\n v_lshl_add_u32 v64, v45, 2, v64")
        e(f"v_bfe_u32 v65, v64, 1, 2\n v_and_b32 v66, 3, v0\n v_lshlrev_b32 v66, 3, v66\n v_lshl_add_u32 v66, v64, 7, v66")
        for q in range(4):
            e(f"v_xor_b32 v67, {q}, v65\n v_lshl_add_u32 v{vRd+q}, v67, 5, v66\n v_add_u32 v{vRd+4+q}, 0x10000, v{vRd+q}")
        e(f"v_lshlrev_b32 v64, 1, v45\n v_and_b32 v65, 7, v0\n v_xor_b32 v65, v65, v64\n v_lshlrev_b32 v47, 4, v65")
        e(f"s_lshl_b32 s{sT1}, s{sJ}, 7\n v_add_u32 v66, s{sT1}, v47")
        e(f"s_lshl_b32 s{sT0}, s{sW}, 5\n v_add_u32 v67, s{sT0}, v46")
        e(f"v_mul_u32_u24 v68, 6144, v67\n v_add_u32 v{vBQ}, v68, v66\n v_mul_u32_u24 v68, 7168, v67\n v_add_u32 v{vB1}, v68, v66")
        e(f"v_lshl_add_u32 v{vB2}, v67, 11, v47")
        e(f"v_lshrrev_b32 v68, 5, v0\n v_lshlrev_b32 v68, 4, v68\n v_and_b32 v69, 3, v46\n s_lshl_b32 s{sT0}, s{sW}, 6\n v_add3_u32 v68, v68, v69, s{sT0}\n v_lshl_add_u32 v{vBO}, v68, 11, v66")
        e(f"s_mov_b32 s{sT0}, s3\n v_lshrrev_b32 v68, 2, v65\n v_xor_b32 v68, s{sT0}, v68\n v_lshl_add_u32 v68, v68, 7, v67\n v_mul_u32_u24 v68, 7168, v68")
        e(f"v_and_b32 v69, 3, v65\n v_lshlrev_b32 v69, 4, v69\n s_lshl_b32 s{sT1}, s{sJ}, 6\n s_add_u32 s{sT1}, s{sT1}, 6144\n v_add3_u32 v{vB1h}, v68, v69, s{sT1}")
        e(f"v_bfe_u32 v64, v0, 2, 1\n v_and_b32 v65, 1, v45\n v_cmp_eq_u32 vcc, v64, v65\n v_mov_b32 v66, 0x3f803f80")
        for k in range(4): e(f"v_cndmask_b32 v{vSel+k}, 0, v66, vcc")
    def peeled(self):
        e = self.e; sp = self.spread; o = self.o
        self.peel = True; self.ring_free_upto = 3
        XA = vT; RA = vQ + 8; SEL = vA + 16; SH = vB; SA = vA
        def xdma(p):
            it = [f"s_lshr_b32 s{sOffX}, s{sRot8+p}, 5", f"s_add_u32 s{sOffX}, s{sOffX}, s{sXcur}"]
            out = []
            for h in range(2):
                g = (it if h == 0 else [f"s_add_u32 s{sOffX}, s{sOffX}, 32768"]) + [f"s_add_u32 m0, s{sLdsW2}, {(p % 2)*32768 + h*4096}"]
                for i in range(4): g.append(("vm", f"buffer_load_dwordx4 v{XA+i}, {srd(SRD_X)}, s{sOffX} offen" + (f" offset:{i*1024}" if i else "") + " lds", ("X", p)))
                out.append(g)
            return out
        def xreads(p):
            it = [("wait", ("X", p))]
            for s in range(4):
                for tt in range(2):
                    for jj in range(2):
                        it.append(("ds", f"ds_read_b64 {ar((4*p+s)*8 + 4*tt + 2*jj, 2)}, v{RA + 2*s + jj} offset:{(p % 2)*32768 + tt*4096}", ("xr", p)))
            return it
        call = lambda fn, c=40: (lambda f: (setattr(f, "cost", c), f)[1])(lambda e_: fn())
        for i in range(4):
            e(f"v_add_u32 v64, {4*i}, v45\n v_xor_b32 v65, v44, v64\n v_lshlrev_b32 v65, 4, v65\n v_lshl_add_u32 v{XA+i}, v64, 11, v65")
            if i: e(f"v_subrev_u32 v{XA+i}, {1024*i}, v{XA+i}")
        e(f"v_lshrrev_b32 v64, 1, v45\n v_xor_b32 v64, v64, v44\n v_lshlrev_b32 v64, 4, v64\n v_and_b32 v65, 1, v45\n v_lshlrev_b32 v65, 3, v65\n v_lshl_add_u32 v65, v44, 8, v65\n v_add_u32 v65, s{sLdsW2}, v65")
        for k in range(8): e(f"v_xor_b32 v66, {32*k}, v64\n v_add_u32 v{RA+k}, v66, v65")
        e(f"v_lshlrev_b32 v64, 7, v44\n v_lshl_add_u32 v64, v45, 3, v64\n v_add_u32 v64, s{sStg}, v64")
        self.emit(self.ones_items() + self.stats_addr(sStA, 0))
        self.cs_selector(SEL)
        e.wait(vm="res")
        self.stamp("res")
        for kp in range(2):
            for tt in range(2):
                for jj in range(2): e.ds(f"ds_read_b64 {vr(vK+8*kp+4*tt+2*jj,2)}, v64 offset:{tt*2048 + kp*64 + jj*32}")
        e.wait(lg="all")
        self.emit(self.stats_mfma(0) + self.stats_mfma(1))
        for kp in range(2):
            for tt in range(2):
                for jj in range(2):
                    for k in range(2):
                        s_ = vK + 8*kp + 4*tt + 2*jj + k; d = vX + 8*(2*kp+jj) + 4*tt + 2*k
                        e(f"v_lshlrev_b32 v{d}, 16, v{s_}\n v_and_b32 v{d+1}, 0xffff0000, v{s_}")
        x0 = xdma(0); x1 = xdma(1)
        self.emit(self.helper("qkv", 2048) + [x0[0]])
        e.wait(vm="sh")
        self.stamp("sh")
        for n in range(6): e(f"v_mfma_f32_16x16x32_bf16 {vr(SA+4*(n//2))}, {vr(SEL)}, {vr(SH+4*n)}, {'0' if n % 2 == 0 else vr(SA+4*(n//2))}")
        self.emit([x0[1]] + self.dma_items(0))
        self.cs_write_partials(SA, 3, vB + 24)
        self.emit(x1 + xreads(0) + self.dma_items(1))
        steps = self.chunk_steps(vA) + self.qkv_steps[32:]
        for p in range(1, 8): steps[4*p-1] = dict(steps[4*p-1], lgtags=[("xr", p)])
        e.wait(vm=("W", 0), lg="all")
        e("s_barrier")
        self.cs_reduce_store(3, 0, vB, "pub")
        self.stats_store()
        self.pre_reads("pk", 0, steps)
        self.stamp("pk_start")
        def signal():
            skip = e.newlabel("skip")
            e(f"s_lshl_b32 s{sT0}, s{sG}, 4\n v_mov_b32 v0, 1\n s_cmp_lg_u32 s{sW}, 0\n s_cbranch_scc1 {skip}")
            e.raw(f"buffer_atomic_add v0, v{vFlagOff}, {srd(SRD_DBG)}, s{sT0} offen sc1")
            e.label(skip)
        fill = [[] for _ in range(32)]
        for p in range(7): sp(fill, xreads(p+1), 4*p, 4*p+2)
        xd = xdma(2); fill[0].append(xd[0]); fill[1].append(xd[1]); fill[2].append(self.dma_items(2))
        for p in range(5):
            xd = xdma(p+3)
            fill[4*p+3].append(xd[0]); fill[4*p+4].append(xd[1]); sp(fill, self.dma_items(p+3), 4*p+5, 4*p+7)
        steps[22] = dict(steps[22], lgtags=[("xr", 6)]); steps[26] = dict(steps[26], lgtags=[("xr", 7)])
        for (s, t) in [(8, 23), (9, 25), (10, 27)]: sp(fill, self.dma_items(s), t, t+2)
        fill[29].append(self.dma_items(11))
        sp(fill, self.dma_items(12)[:2], 30, 32)
        fill[2].append(self.helper("qkv", 4096)); fill[22].insert(0, self.helper("qkv", 0))
        fill[4].append(("wait", "pub")); fill[6].append(call(signal))
        tp = o.get("tp", 18)
        fill[tp] += [f"v_lshrrev_b32 v0, 6, v{vL16}", f"v_lshlrev_b32 v0, 4, v0", self.poll_load("dbg")]
        fill[tp+4] += [call(lambda: (e(f"v_lshrrev_b32 v0, 6, v{vL16}\n v_lshlrev_b32 v0, 4, v0"), self.poll_wait("dbg", 8), self.cs_gather_loads(3, 0, vB)))]
        fill[tp+5] += self.stats_load_items(sStA)
        fill[tp+10] += [call(lambda: (e.wait(vm="csg"), self.cs_gather_finish(3, 0, vB)))]
        steps[30] = dict(steps[30], lgtags=["csf"])
        fill[30] += self.cs_reads(0)
        for (d, mk, add) in [(sLh, 12, 128), (sLp, 3, 1024), (sLp1, 11, 512)]:
            fill[27].append([f"s_and_b32 s{d}, s{sJ}, {mk}", f"s_lshl_b32 s{d}, s{d}, 7", f"s_add_u32 s{d}, s{d}, s{sLrow}", f"s_add_u32 s{d}, s{d}, {add}"])
        fill[26].append([f"s_lshl_b32 s{sLcol}, s{sW}, 4", f"s_add_u32 s{sLcol}, s{sLcol}, s{sJ}", f"s_lshl_b32 s{sLcol}, s{sLcol}, 7"])
        fill[28] += [f"s_mov_b32 s{SRD_X+k}, s{SRD_W2+k}" for k in range(2)]
        fill[28] += [[f"s_and_b32 s{sT0}, s{sJ}, 7", f"s_cmp_eq_u32 s{sT0}, 3", f"s_cselect_b32 s{SRD_X+2}, 0, s{SRD_W2+2}"]]
        self.fstamp(fill, 8, "pk_8"); self.fstamp(fill, 16, "pk_16"); self.fstamp(fill, 24, "pk_24")
        self.run("pk", 0, steps, fill, t_end=32)
        e.wait(vm="stats", lg="cs")
        e("s_branch Ljoin")
        self.peel = False
        e.vm_done = e.vm_n; e.lg_done = e.lg_n; self.ring_free_upto = 7
        for s in range(8): e.vm_n += 1; e.vm_tag[("W", s)] = e.vm_n + 7 - s
        n0 = len(e.ins); self.pre_reads("qkv", 0, self.qkv_steps); del e.ins[n0:]
    def layer(self):
        e = self.e; sp = self.spread; o = self.o
        cat = lambda xs: sum(xs, [])
        e.label("Llayer")
        self.stamp("Lstart")
        steps = self.qkv_steps
        fill = [[] for _ in steps]
        tabs = [(sRot8+st, sXA) for st in range(8)]
        for st in range(2): self.emit(self.xload_items(tabs[st][0], tabs[st][1], 4*st, "xa"))
        self.x_sched(fill, "xa", tabs, 2, 8, 0)
        fill[26].append(self.helper("qkv", 0)); fill[55].append(self.helper("wo", 0))
        for (t, pcs) in o.get("sht", [(33, [0, 1, 2])]):
            if pcs: fill[t].append(self.w1_share_dma(pcs))
        self.w_schedule_head(fill, 0, 23)
        sp(fill, self.stats_load_items(sStA), 22, 26)
        sp(fill, self.flag_items(1, "kst"), 60, 61)
        sp(fill, [self.poll_load(1)], 68, 69)
        sp(fill, [self.poll_check(1)], 77, 78)
        sp(fill, self.kv_dma_items(0), 78, 86)
        sp(fill, self.kv_own_writes(0), 87, 91)
        sp(fill, self.flag_items(2, "vst"), 87, 88)
        sp(fill, [self.poll_load(2)], 94, 95)
        sp(fill, self.cs_reads(0), 28, 30)
        sp(fill, self.vstat_reads() + self.csv_reads(), 55, 60)
        sp(fill, self.cs_reads(2), 91, 93)
        self.pour(fill, self.stats_items("qkv") + [self.at_least(32)] + self.kq_epilogue(vA, vK, vC1, self.kv_stores(vK, vL16, "kst")), 32, 53)
        self.pour(fill, self.v_epilogue(vB, self.kv_stores(vV, vL16b, "vst")), 62, 79)
        qe = self.kq_epilogue(vA, vQ, vSum)
        self.pour(fill, self.mask_items() + [f"v_mul_f32 v{vSum+tt}, {hex(f2u(LOG2E/math.sqrt(32.0)))}, v{vC1+tt}" for tt in range(2)], 79, 95)
        fill[95] += qe[:21]
        for (t, n) in [(1, "k_first"), (32, "k_end"), (64, "v_end")]: self.fstamp(fill, t, n)
        self.run("qkv", 0, steps, fill, labels={32: "Ljoin"})
        self.stamp("qkv_end")
        e.wait(vm=("kvd", 0), lg="all")
        e("s_barrier")
        side = cat(self.kv_reads(0, 0, b) for b in range(6))
        for k, it in enumerate(qe[21:45]):
            if k % 2 == 0: e.item(side.pop(0))
            e.item(it)
        self.stamp("attn_start")
        s1 = [[] for _ in range(18)]; s2 = [[] for _ in range(18)]
        bar = lambda vm: [[("wait", vm, "all"), "s_barrier"]]
        steps = self.chunk_steps(vX, xtag="xo", inplace=True, std=(0, 4))
        tabs = [(sRot4 + st % 4, sO if st < 4 else sXcur) for st in range(8)]
        s1[0].append(lambda e_: self.poll_wait(2))
        sp(s1, self.kv_dma_items(1), 0, 5)
        sp(s1, cat(self.kv_reads(0, 0, b) for b in (6, 7)) + self.kv_own_writes(1) + cat(self.kv_reads(0, 1, b) for b in range(4)), 1, 9)
        sp(s1, qe[45:], 0, 8)
        sp(s1, self.dma_items(30, True, True), 5, 9)
        s2[0] += bar(("kvd", 1)) + [f"s_add_u32 s{sXcur}, s{sO}, 32768"]
        sp(s2, cat(self.kv_reads(1, 0, b) for b in range(8)) + cat(self.kv_reads(0, 1, b) for b in range(4, 8)) + cat(self.kv_reads(1, 1, b) for b in range(8)), 0, 8)
        sp(s2, self.dma_items(31, False, True), 1, 3)
        s2[2].append(self.w1_share_dma(o.get("sha", [3, 4, 5, 6])))
        s1[9] += bar(None)
        sp(s1, cat(self.dma_items(s, None, True) for s in (24, 25)), 10, 18)
        fs, ps, cs_ = o.get("t1", (10, 14, 16))
        s2[fs] += self.flag_items(3, ("o", 0))
        sp(s2, cat(self.dma_items(s, None, True) for s in (26, 27, 28, 29)), 9, 15)
        s2[9] += [self.helper("w1", 0)]; s2[12] += [self.helper("w1", 2048)]
        s2[ps] += [self.poll_load(3)]
        s2[cs_].append(lambda e_: self.poll_wait(3))
        xl = self.xload_items(tabs[0][0], tabs[0][1], 0, "xo") + self.xload_items(tabs[1][0], tabs[1][1], 4, "xo")
        k = 4*(18 - cs_) - 1
        sp(s2, xl[:k], cs_, 18)
        self.attention(s1, s2, xl[k:k+3])
        self.stamp("attn_end")
        self.ring_free_upto = 31
        fill = [[] for _ in steps]
        e("s_barrier")
        self.pre_reads("wo", 24, steps)
        self.emit(xl[k+3:])
        e.item(self.cs_produce())
        f4 = o.get("f4", 1)
        fill[f4] += self.flag_items(4, ("o", 1))
        self.stamp("wo_start")
        self.x_sched(fill, "xo", tabs, 2, 4, 0)
        pw = o.get("pw", 7)
        sp(fill, [self.poll_load(4)], pw, pw+1)
        sp(fill, [self.poll_check(4)], pw+4, pw+5)
        sp(fill, cat(self.xload_items(tabs[st][0], tabs[st][1], 4*st, "xo") for st in (4, 5)), pw+4, 16)
        self.x_sched(fill, "xo", tabs, 6, 8, 16)
        fill[7] += [self.cs_produce_b()]
        sp(fill, self.flag_items(5, ("xo", 16)), 17, 18)
        ca, cb, cc = self.cs_consume_pieces(5, 4, 3, vB)
        fill[28].append(ca)
        nw = o.get("nw", 4)
        sp(fill, cat(self.dma_items(s) for s in range(32, 32+nw)), 24, 24 + 2*nw - (nw == 4))
        fill[17] += self.ones_items()
        fill[29] += self.pub_addr(sXB, 0) + self.stats_addr(sStB, 0)
        pk = self.pack_items(0); st = self.xstore_items(0)
        fill[30] += pk[:4] + [st[0]]; fill[31] += pk[4:] + [st[1]] + self.stats_mfma(0)
        self.fstamp(fill, 16, "wo_half")
        self.run("wo", 24, steps, fill)
        self.stamp("wo_end")
        self.publish_tail()
        steps = self.chunk_steps(vA, xtag="xb", std=(0,)) + self.chunk_steps(vB) + self.chunk_steps(vA) + self.half_steps(vQ)
        for (ch, ks) in self.F2U:
            steps += self.stage_steps([vB, vA, vB, vX][ch], ks, ks == 0 and ch < 3, ("h", 4*ks+3) if ch == 0 else None)
        e.wait(vm=("W", 33), lg="all")
        e("s_barrier"); self.ring_free_upto = 39
        n1 = o.get("n1", 2)
        e.item(cb)
        for s in range(32+nw, 32+nw+n1): self.emit(self.dma_items(s))
        self.pre_reads("ffn", 32, steps)
        self.emit(self.flag_items(6, "pub", True))
        self.stamp("t2_flag")
        e.item(cc)
        for s in range(32+nw+n1, 40): self.emit(self.dma_items(s))
        self.poll_wait(6, own=1)
        self.stamp("ffn_start")
        fill = [[] for _ in steps]
        tabs = [(sRot8+st, sXB) for st in range(8)]
        for st in range(2): self.emit(self.xload_items(tabs[st][0], tabs[st][1], 4*st, "xb"))
        self.x_sched(fill, "xb", tabs, 2, 8, 0)
        for r, t in enumerate(o.get("pft", [30, 30, 38, 46, 54, 54, 72, 72])): fill[t].append(self.prefetch(r))
        for (t, kind, arg) in o.get("hlp", [(26, "w1", 4096), (55, "half", 0), (80, "f", 0), (83, "f", 1), (127, "f", 2), (147, "f", 3), (177, "qkv", 2048), (187, "qkv", 4096)]):
            fill[t].append(self.helper(kind, arg))
        nw3 = o.get("nw3", 4)
        self.w_schedule_head(fill, 32, 87 + nw3)
        fill[0].append([f"s_cmp_eq_u32 s{sLayer}, 0", f"s_cselect_b32 s{SRD_QKV+2}, {1024*3072*2}, 0"])
        sp(fill, self.stats_load_items(sStB), 22, 26)
        def hload(ks):
            if ks < 6: ad = [f"s_lshr_b32 s{sOffX}, s{sPar1 if ks & 1 else sPar0}, 5", f"s_add_u32 s{sOffX}, s{sOffX}, s{sXcur}"] + ([f"s_add_u32 s{sOffX}, s{sOffX}, {(ks//2)*65536}"] if ks >= 2 else [])
            else: ad = [f"s_add_u32 s{sOffX}, s{sH}, s{sHs}", f"s_add_u32 s{sOffX}, s{sOffX}, {3*65536}"]
            return self.xload_items(None, ad, 4*ks, "h")
        fill[93].append([f"s_lshl_b32 s{sXcur}, s{sHs}, 1", f"s_add_u32 s{sXcur}, s{sXcur}, s{sH}"])
        def hoff(c):
            if c < 3: return [f"s_lshl_b32 s{sT1}, s{sJ}, 12", f"s_add_u32 s{sT1}, s{sT1}, s{sH}"] + ([f"s_add_u32 s{sT1}, s{sT1}, {c*65536}"] if c else [])
            return [f"s_lshl_b32 s{sT1}, s{sJ}, 11", f"s_add_u32 s{sT1}, s{sT1}, s{sH}", f"s_add_u32 s{sT1}, s{sT1}, {3*65536}"]
        def handoff(kind, val, tag, tf, tc):
            sp(fill, self.flag_items(val, tag), tf, tf+1)
            sp(fill, [self.poll_load(val)], tc-6, tc-5)
            sp(fill, [self.poll_check(val)], tc, tc+1)
        handoff("h", 7, ("hs", 0), 70, 99);  sp(fill, hload(0) + hload(1), 100, 110)
        handoff("h", 8, ("hs", 1), 99, 114); sp(fill, hload(2) + hload(3), 114, 126)
        handoff("h", 9, ("hs", 2), 119, 133); sp(fill, hload(4) + hload(5), 133, 142)
        handoff("h", 10, ("hs", 3), 133, 149); sp(fill, hload(6), 149, 155)
        handoff("p", 11, ("ps", 1), 181, 198); sp(fill, self.partial_loads(0) + self.partial_loads(1), 198, 203)
        handoff("p1", 12, ("ps", 2), 203, 216); sp(fill, self.partial_loads(2), 216, 218)
        for (tile, t) in [(3, 28), (4, 63), (5, 94), (6, 112)]: sp(fill, self.cs_reads(tile), t, t+1)
        sp(fill, self.partial_items(vB, 0, 0), 162, 164); sp(fill, self.partial_items(vB, 0, 1), 164, 167)
        sp(fill, self.partial_items(vA, 1, 0) + self.partial_items(vA, 1, 1), 168, 175)
        sp(fill, self.partial_items(vB, 2, 0), 194, 196); sp(fill, self.partial_items(vB, 2, 1), 196, 198)
        sp(fill, self.ident_items() + self.ones_items(), 183, 192)
        sp(fill, self.partial_adds(0) + self.partial_adds(1), 207, 216)
        self.pour(fill, self.stats_items("ffn") + [self.at_least(32)] + self.silu_epilogue(vA, 4, hoff(0), ("hs", 0)), 30, 63)
        self.pour(fill, self.silu_epilogue(vB, 4, hoff(1), ("hs", 1)), 65, 93)
        self.pour(fill, self.silu_epilogue(vA, 4, hoff(2), ("hs", 2)), 96, 112)
        self.pour(fill, self.silu_epilogue(vQ, 2, hoff(3), ("hs", 3)), 114, 127)
        fill[219] += self.pub_addr(sXA, LAYER) + self.stats_addr(sStA, LAYER)
        pa = self.partial_adds(2)
        fill[223] += pa[:7]
        for (t, n) in [(1, "c0_first"), (32, "c0_end"), (64, "c1_end"), (96, "c2_end"), (112, "half_end"), (140, "f2_28"), (168, "f2_56"), (196, "f2_84")]:
            self.fstamp(fill, t, n)
        self.run("ffn", 32, steps, fill)
        self.emit(pa[7:] + self.pack_items(0))
        self.stamp("ffn2_end")
        if any(k.startswith("prof_") for k in o):
            e(f"s_lshl_b32 s{sT0}, s2, 2\n s_add_u32 s{sT0}, s{sT0}, s{sW}\n s_lshl_b32 s{sT0}, s{sT0}, 1\n s_add_u32 s{sT0}, s{sT0}, s{sLayer}\n s_lshl_b32 s{sT0}, s{sT0}, 8")
            e(f"s_add_u32 s{sT0}, s{sT0}, {WS_STAMP + 0x400000}\n v_lshrrev_b32 v0, 2, v{vL16}")
            e.vm(f"buffer_store_dword v{vProf}, v0, {srd(SRD_WS)}, s{sT0} offen")
        e(f"s_cmp_lg_u32 s{sLayer}, 0\n s_cbranch_scc1 Lfinal")
        self.emit(self.xstore_items(0) + self.stats_mfma(0))
        self.publish_tail()
        e.wait(vm=("W", 89))
        e("s_barrier"); self.ring_free_upto = 95
        for s in range(88+nw3, 88+nw3+n1): self.emit(self.dma_items(s))
        self.pre_reads("qkv2", 0, self.qkv_steps)
        self.emit(self.flag_items(13, "pub", True))
        self.stamp("t3_flag")
        for s in range(88+nw3+n1, 96): self.emit(self.dma_items(s))
        for s in [sXA, sXB, sO, sH, sKVown, sStA, sStB, sP, sKVb, sKVb+1]: e(f"s_add_u32 s{s}, s{s}, {LAYER}")
        for s in [sLkvS, sLkvP, sLh, sLp, sLp1, sLcol]: e(f"s_add_u32 s{s}, s{s}, 64")
        self.poll_wait(13, own=1)
        self.stamp("trans_end")
        if self.stamps: e(f"s_add_u32 s{sStamp}, s{sStamp}, 512"); e.wait(vm="all")
        e(f"s_mov_b32 s{sLayer}, 1\n s_add_u32 s{sLrow}, s{sLrow}, 64\n s_mov_b32 s{SRD_X+2}, 0\n s_branch Llayer")
        e.label("Lfinal")
        e("s_nop 7")
        self.emit(self.pack_items(1))
        e(f"v_lshrrev_b32 v48, 4, v{vL16}\n v_and_b32 v49, 15, v48\n v_lshlrev_b32 v49, 11, v49\n v_bfe_u32 v50, v48, 4, 1\n v_lshl_add_u32 v49, v50, 5, v49")
        e(f"v_lshrrev_b32 v50, 5, v48\n v_lshl_add_u32 v49, v50, 4, v49")
        e(f"s_lshl_b32 s{sT0}, s{sTB}, 16\n s_lshl_b32 s{sT1}, s{sJ}, 7\n s_add_u32 s{sT0}, s{sT0}, s{sT1}\n s_add_u32 s{sT1}, s{sT0}, 32768")
        for kp in range(2):
            for tt in range(2):
                p = vK + 8*kp + 4*tt
                for k in range(2): e(f"v_permlane16_swap_b32 v{p+k}, v{p+2+k}")
                e.vm(f"buffer_store_dwordx4 {vr(p)}, v49, {srd(SRD_OUT)}, s{sT1 if tt else sT0} offen" + (" offset:64" if kp else ""))
        self.stamp("trans_end")
        e.label("Lend")
        e("s_endpgm")
    def build(self):
        self.qkv_steps = self.chunk_steps(vA, xtag="xa", std=(0,)) + self.chunk_steps(vB, swap=True) + self.chunk_steps(vA)
        self.setup()
        self.peeled()
        self.layer()
        body = self.e.finish()
        hdr = open("cdna_kernels/" + KNAME[:-7] + ".s.ref").read().split("; Override launch")[0] if False else ""
        out = [f"; stamps: {' '.join(self.snames)}"] if self.stamps else []
        if any(k.startswith("prof_") for k in self.o): out = ["; prof " + str(self.o)]
        out += [f"; @launch grid=(256,1,1) block=(256,1,1) lds={LDS_BYTES}",
               "; Generated by a hand-written generator script: persistent fused kernel, one workgroup per CU.",
               '.amdgcn_target "amdgcn-amd-amdhsa--gfx950"', ".text", f".globl {KNAME}", ".p2align 8", f".type {KNAME},@function", f"{KNAME}:"]
        out += body + ["Lcodeend:"]
        out += ['.section .rodata,"a"', ".p2align 6", f".amdhsa_kernel {KNAME}", "  .amdhsa_next_free_vgpr 512", "  .amdhsa_next_free_sgpr 102",
                "  .amdhsa_accum_offset 256", "  .amdhsa_group_segment_fixed_size 0", "  .amdhsa_kernarg_size 72", "  .amdhsa_user_sgpr_count 2",
                "  .amdhsa_user_sgpr_kernarg_segment_ptr 1", "  .amdhsa_system_sgpr_workgroup_id_x 1", ".end_amdhsa_kernel"]
        return "\n".join(out) + "\n"

if __name__ == "__main__":
    path = sys.argv[1]
    stamps = "stamps" in sys.argv[2:]
    opts = {}
    for a in sys.argv[2:]:
        if "=" in a:
            k, v = a.split("="); opts[k] = eval(v)
    g = Gen(stamps, opts)
    txt = g.build()
    open(path, "w").write(txt)
    print("lines", txt.count("\n"), "bytes", len(txt), "nops", g.e.nnops, "vm_max", g.e.vm_max)
```
